```python
import torch

def _softmax(x, axis=-1):
    return torch.softmax(x, dim=axis)
def _gelu(x):
    return torch.nn.functional.gelu(x, approximate="tanh")
def _silu(x):
    return torch.nn.functional.silu(x)
def _sigmoid(x):
    return torch.sigmoid(x)
def _layernorm(x, axis=-1, eps=1e-5):
    m = x.mean(dim=axis, keepdim=True)
    v = x.var(dim=axis, keepdim=True, unbiased=False)
    return (x - m) / torch.sqrt(v + eps)
def _scatter_add(tgt, idx, src, axis=0):
    return tgt.clone().index_add_(axis, idx, src)
def _segment_sum(src, seg, n):
    out = torch.zeros((n,) + src.shape[1:], dtype=src.dtype)
    return out.index_add_(0, seg, src)
def _pad(x, pw):
    flat = tuple(v for pair in reversed(pw) for v in pair)
    return torch.nn.functional.pad(x, flat)

kernel_name = 'standalone__molecular_angular_gemnet__graph'

def setup_inputs():

    _w = (lambda a: (lambda t: t.to(torch.bfloat16) if t.is_floating_point() else t)(torch.as_tensor(a)))
    N, deg, De, L = 50000, 16, 4, 2
    E = N * deg
    T = E * deg
    NR = 8
    dist = torch.rand(E).to(float)
    angle = (torch.rand(T) * torch.pi).to(float)
    centers = torch.linspace(0.0, 1.0, NR).to(float)
    ang_freq = torch.arange(1, L + 1).to(float)
    return {
        "m": _w((lambda *s: torch.randn(*s, dtype=torch.bfloat16) * 0.05)(E, De)),
        "idx_in": _w((lambda lo, hi, *s: torch.randint(lo, hi, s))(0, E, T).to(torch.int64)),
        "idx_out": _w((lambda lo, hi, *s: torch.randint(lo, hi, s))(0, E, T).to(torch.int64)),
        "dist": _w(dist),
        "angle": _w(angle),
        "centers": _w(centers),
        "ang_freq": _w(ang_freq),
        "w_rbf": _w((lambda *s: torch.randn(*s, dtype=torch.bfloat16) * 0.2)(NR, De)),
        "w_sbf": _w((lambda *s: torch.randn(*s, dtype=torch.bfloat16) * 0.2)(NR * L, De)),
        "w_down": _w((lambda *s: torch.randn(*s, dtype=torch.bfloat16) * 0.2)(De, De)),
        "w_up": _w((lambda *s: torch.randn(*s, dtype=torch.bfloat16) * 0.2)(De, De)),
    }

def reference(m, idx_in, idx_out, dist, angle, centers, ang_freq, w_rbf, w_sbf, w_down, w_up):
    E, De = m.shape[0], m.shape[1]
    NR = centers.shape[0]
    L = ang_freq.shape[0]
    rbf = torch.exp(-10.0 * (dist[:, None] - centers[None, :]) ** 2)
    cbf = torch.cos(ang_freq[None, :] * angle[:, None])
    rbf_t = rbf[idx_out]
    sbf = torch.reshape(rbf_t[:, :, None] * cbf[:, None, :], (-1, NR * L))
    x = (m[idx_in] @ w_down) * (sbf @ w_sbf)
    agg = _segment_sum(x, idx_out, E)
    return m + (agg @ w_up) * (rbf @ w_rbf)
```

```python
import re

REG = re.compile(r'\b([vs])(\d+)\b|\b([vs])\[(\d+):(\d+)\]|\b(vcc_lo|vcc_hi|vcc|exec_lo|exec_hi|exec|m0|scc)\b')

def regs_of(tok):
    out = set()
    for m in REG.finditer(tok):
        if m.group(1):
            out.add(m.group(1) + m.group(2))
        elif m.group(3):
            for i in range(int(m.group(4)), int(m.group(5)) + 1):
                out.add(m.group(3) + str(i))
        else:
            n = m.group(6)
            if n.startswith('vcc'): out.add('vcc')
            elif n.startswith('exec'): out.add('exec')
            else: out.add(n)
    return out

TRANS = ('v_exp_f32', 'v_log_f32', 'v_rcp_f32', 'v_rsq_f32', 'v_sqrt_f32', 'v_sin_f32', 'v_cos_f32')

class I:
    def __init__(self, text):
        self.text = text
        t = text.split(';')[0].strip()
        self.label = t.endswith(':')
        self.op = '' if (self.label or not t) else t.split()[0]
        self.kind = 'other'
        self.dst = set(); self.src = set()
        if not self.op or self.op.startswith('.'):
            self.kind = 'none'; return
        rest = t[len(self.op):].strip()
        ops = []; depth = 0; cur = ''
        for ch in rest:
            if ch in '[(': depth += 1
            if ch in '])': depth -= 1
            if ch == ',' and depth == 0:
                ops.append(cur.strip()); cur = ''
            else: cur += ch
        if cur.strip(): ops.append(cur.strip())
        self.ops = ops
        op = self.op
        nd = 1
        self.dpp = bool(re.search(r'row_|quad_perm|wave_|_dpp', t))
        self.wide_store = False
        if op.startswith('v_'):
            self.kind = 'valu'
            if op.startswith('v_mad_u64_u32') or re.match(r'v_(add|sub|subrev|addc|subb)_co', op): nd = 2
            if op.startswith('v_nop'): nd = 0
        elif op.startswith('ds_'):
            self.kind = 'ds'
            nd = 1 if ('read' in op or 'rtn' in op or 'permute' in op or 'swizzle' in op) else 0
        elif op.startswith('buffer_') or op.startswith('global_'):
            self.kind = 'vmem'
            if 'load' in op: nd = 1
            elif 'atomic' in op and ' sc0' in t: nd = 1
            else: nd = 0
            if 'store' in op and ('x3' in op or 'x4' in op): self.wide_store = True
        elif op.startswith('s_load') or op.startswith('s_buffer_load') or op.startswith('s_memtime') or op.startswith('s_memrealtime'):
            self.kind = 'smem'
        elif op.startswith('s_waitcnt'):
            self.kind = 'wait'; return
        elif op.startswith('s_nop'):
            self.kind = 'nop'; return
        elif op.startswith('s_cbranch') or op.startswith('s_branch') or op in ('s_endpgm', 's_barrier', 's_setprio', 's_sleep'):
            self.kind = 'ctl'; nd = 0
            if 'vcc' in op: self.src.add('vcc')
            if 'exec' in op: self.src.add('exec')
            return
        elif op.startswith('s_'):
            self.kind = 'salu'
            if op.startswith('s_cmp') or op.startswith('s_bitcmp'): nd = 0
        for k, o in enumerate(ops):
            r = regs_of(o)
            if k < nd: self.dst |= r
            else: self.src |= r
        if 'nodep' in text: self.dst = set()
        if op.startswith('v_cmpx'): self.dst.add('exec')
        if 'saveexec' in op: self.dst.add('exec'); self.src.add('exec')
        if op.startswith('v_fmac') or op.startswith('v_pk_fmac') or op.startswith('v_dot2c') or op.startswith('v_writelane') or self.dpp or 'd16' in op and 'read' in op or 'd16' in op and 'load' in op:
            self.src |= self.dst
        if 'atomic' in op and nd == 1: self.src |= self.dst
        if op.startswith('v_cndmask') and len(ops) == 3: self.src.add('vcc')
        if re.match(r'v_(addc|subb)', op): self.src.add('vcc')
        self.trans = op.replace('_e32', '').replace('_e64', '') in TRANS
        self.sdwa_dst = ('dst_sel:WORD' in t) or ('dst_sel:BYTE' in t)

def process(lines):
    out = []
    vm = []
    lg = []
    hist = []
    def push(txt, ins=None):
        out.append(txt)
        if ins is None: ins = I(txt)
        if ins.kind == 'none' or ins.label: return
        if ins.kind == 'nop':
            n = int(ins.text.split()[1]) + 1
            for _ in range(n): hist.append(None)
        else: hist.append(ins)
    for ln in lines:
        ins = I(ln)
        if ins.kind == 'none' or ins.label:
            out.append(ln); continue
        if ins.kind == 'wait':
            m = re.search(r'vmcnt\((\d+)\)', ln)
            if m:
                n = int(m.group(1)); del vm[:max(0, len(vm) - n)]
            m = re.search(r'lgkmcnt\((\d+)\)', ln)
            if m:
                n = int(m.group(1))
                if n == 0 or not any(e[1] for e in lg): del lg[:max(0, len(lg) - n)]
            push(ln, ins); continue
        touched = ins.src | ins.dst
        nv = None; nl = None
        for k in range(len(vm) - 1, -1, -1):
            if vm[k] & touched:
                nv = len(vm) - 1 - k; break
        for k in range(len(lg) - 1, -1, -1):
            if lg[k][0] & touched:
                nl = len(lg) - 1 - k
                if any(e[1] for e in lg): nl = 0
                break
        if nv is not None or nl is not None:
            w = 's_waitcnt'
            if nv is not None:
                nv = min(nv, 63); w += ' vmcnt(%d)' % nv; del vm[:len(vm) - nv]
            if nl is not None:
                nl = min(nl, 15); w += ' lgkmcnt(%d)' % nl; del lg[:len(lg) - nl]
            push('    ' + w)
        need = 0
        def dist(pred, ws):
            nonlocal need
            for d in range(1, ws + 1):
                if d > len(hist): break
                p = hist[-d]
                if p is not None and pred(p):
                    need = max(need, ws - (d - 1)); break
        sg = lambda S: {r for r in S if r[0] == 's' and r != 'scc' or r == 'vcc'}
        vg = lambda S: {r for r in S if r[0] == 'v' and r != 'vcc'}
        if ins.kind == 'valu':
            dist(lambda p: p.kind == 'vmem' and p.wide_store and (vg(p.src) & vg(ins.dst)), 2)
            if ins.dpp:
                dist(lambda p: p.kind == 'valu' and (vg(p.dst) & vg(ins.src)), 2)
                dist(lambda p: p.kind == 'valu' and 'exec' in p.dst, 5)
            dist(lambda p: p.kind == 'valu' and (sg(p.dst) & sg(ins.src)), 2)
            if ins.op.startswith('v_readlane') or ins.op.startswith('v_readfirstlane') or ins.op.startswith('v_writelane'):
                dist(lambda p: p.kind == 'valu' and (vg(p.dst) & vg(ins.src)), 1)
                dist(lambda p: p.kind == 'valu' and 'exec' in p.dst, 4)
                dist(lambda p: p.kind == 'valu' and (sg(p.dst) & sg(ins.src)), 4)
            if 'exec' in ins.src: dist(lambda p: p.kind == 'valu' and 'exec' in p.dst, 2)
            if not ins.trans: dist(lambda p: p.kind == 'valu' and p.trans and (vg(p.dst) & vg(ins.src)), 1)
            dist(lambda p: p.kind == 'valu' and p.sdwa_dst and (vg(p.dst) & vg(touched)), 1)
        if ins.kind in ('ds', 'vmem'):
            dist(lambda p: p.kind == 'vmem' and p.wide_store and (vg(p.src) & vg(ins.dst)), 1)
            dist(lambda p: p.kind == 'valu' and p.trans and (vg(p.dst) & vg(ins.src)), 1)
        if ins.kind == 'vmem':
            dist(lambda p: p.kind == 'valu' and (sg(p.dst) & sg(ins.src)), 5)
        if ins.kind in ('salu', 'smem', 'ctl'):
            dist(lambda p: p.kind == 'valu' and ((sg(p.dst) | ({'exec'} & p.dst)) & (sg(ins.src) | ({'exec'} & ins.src))), 2)
        if need > 0: push('    s_nop %d' % (need - 1))
        push(ln, ins)
        if ins.kind == 'vmem': vm.append(set(ins.dst))
        elif ins.kind == 'ds': lg.append((set(ins.dst), False))
        elif ins.kind == 'smem': lg.append((set(ins.dst), True))
    return out

def interleave(*streams):
    items = []
    for si, s in enumerate(streams):
        n = len(s)
        for k, g in enumerate(s):
            items.append(((k + 0.5) / n, si, k, g))
    items.sort(key=lambda x: (x[0], x[1]))
    res = []
    for it in items: res.append(it[3])
    return res

def flat(groups):
    r = []
    for g in groups:
        if isinstance(g, str): r.append(g)
        else: r.extend(flat(g))
    return r
```

```python
from asmlib import *

NWG1 = 250
CH = 25600
CHB = 159744
META = 0x5000000
MAXO = 0x200000
PROF = 0x6000000
MAG_OUT = 1374390
MAG_Q = 21474

def dpp_scan(op, r, full=True):
    L = []
    for s in (1, 2, 4, 8):
        L.append(f'    {op}_dpp v{r}, v{r}, v{r} row_shr:{s} row_mask:0xf bank_mask:0xf')
    if full:
        L.append(f'    {op}_dpp v{r}, v{r}, v{r} row_bcast:15 row_mask:0xa bank_mask:0xf')
        L.append(f'    {op}_dpp v{r}, v{r}, v{r} row_bcast:31 row_mask:0xc bank_mask:0xf')
    return L

def srd(d, plo, addreg, nrec, extra=0):
    L = []
    if addreg is None:
        L.append(f'    s_add_u32 s{d}, s{plo}, {extra}')
        L.append(f'    s_addc_u32 s{d+1}, s{plo+1}, 0')
    else:
        L.append(f'    s_add_u32 s{d}, s{plo}, s{addreg}')
        L.append(f'    s_addc_u32 s{d+1}, s{plo+1}, 0')
        if extra:
            L.append(f'    s_add_u32 s{d}, s{d}, {extra}')
            L.append(f'    s_addc_u32 s{d+1}, s{d+1}, 0')
    L.append(f'    s_mov_b32 s{d+2}, {nrec}')
    L.append(f'    s_mov_b32 s{d+3}, 0x00020000')
    return L

def gen_k1(P):
    LD = P.get('k1_ld', 'nt'); ST = P.get('k1_st', 'sc1'); prof = P.get('prof', 0)
    WSB = P.get('wsb', 0)
    CS, KEYS, SCR = 4096, 57344, 4096
    T16, T8, T4, FOUR, T12 = 1, 2, 3, 4, 5
    TMP = [6, 7, 8, 9, 10, 11, 127, 0]
    A, B, ANG = 12, 64, 114
    def rin(k, j): return (A if k == 0 else B) + (4 * j if j < 6 else 48)
    def rout(k, j): return (A if k == 0 else B) + (24 + 4 * j if j < 6 else 49)
    def rang(j): return ANG + 2 * j
    S_WAVE, S_WAVE4, S_MO, S_MQ, S_NEG, S_TOT, S_PRE, S_ROW = 46, 47, 48, 49, 50, 51, 52, 53
    sro = [0]
    def soff(val):
        r = 42 + sro[0] % 4; sro[0] += 1
        return r, f'    s_mov_b32 s{r}, {val}'
    pc = [0]
    def stamp():
        if not prof: return []
        r = 60 + 2 * pc[0]; pc[0] += 1
        return [f'    s_memrealtime s[{r}:{r+1}]']
    def bar(): return ['    s_waitcnt lgkmcnt(0)', '    s_barrier'] + stamp()

    def load_row(k, j):
        rec = k * CH + j * 4096
        g = []
        r, t = soff(rec * 4)
        if j < 6:
            g.append([t, f'    buffer_load_dwordx4 v[{rin(k,j)}:{rin(k,j)+3}], v{T16}, s[8:11], s{r} offen {LD}'])
            g.append([t, f'    buffer_load_dwordx4 v[{rout(k,j)}:{rout(k,j)+3}], v{T16}, s[12:15], s{r} offen {LD}'])
            r, t = soff(rec * 2)
            g.append([t, f'    buffer_load_dwordx2 v[{rang(j)}:{rang(j)+1}], v{T8}, s[16:19], s{r} offen {LD}'])
        else:
            g.append([t, f'    buffer_load_dword v{rin(k,j)}, v{T4}, s[8:11], s{r} offen {LD}'])
            g.append([t, f'    buffer_load_dword v{rout(k,j)}, v{T4}, s[12:15], s{r} offen {LD}'])
            r, t = soff(rec * 2)
            g.append([t, f'    v_lshrrev_b32 v{rang(j)}, 1, v{T4}',
                      f'    buffer_load_ushort v{rang(j)}, v{rang(j)}, s[16:19], s{r} offen {LD}'])
        return g
    def recs(k):
        R = []
        for j in range(7):
            for i in range(4 if j < 6 else 1):
                R.append((j, rin(k, j) + i, rout(k, j) + i, rang(j) + i // 2, i & 1))
        return R
    def conv1(I_, O, a, hi, ta, tb):
        return [
            f'    v_mul_hi_u32_u24 v{ta}, s{S_MO}, v{O}',
            f'    v_mul_hi_u32_u24 v{tb}, s{S_MQ}, v{I_}',
            f'    v_mad_i32_i24 v{O}, v{ta}, s{S_NEG}, v{O}',
            f'    v_lshl_add_u32 v{ta}, v{tb}, 8, v{ta}',
            (f'    v_and_b32 v{tb}, 0xffff0000, v{a}' if hi else f'    v_lshlrev_b32 v{tb}, 16, v{a}'),
            f'    v_lshl_add_u32 v{I_}, v{I_}, 12, v{O}',
            f'    v_mul_f32 v{tb}, 0.15915494, v{tb}',
            f'    v_lshlrev_b32 v{O}, 2, v{ta}',
            f'    v_fract_f32 v{tb}, v{tb}',
            f'    ds_add_u32 v{O}, v{FOUR}',
            f'    v_cos_f32 v{tb}, v{tb}',
            f'    v_add_u32 v{I_}, 1, v{I_}',
            f'    v_cvt_pknorm_i16_f32 v{tb}, v{tb}, 0',
            f'    v_lshl_or_b32 v{O}, v{ta}, 18, v{tb}',
        ]
    def conv_row(k, j):
        R = [r for r in recs(k) if r[0] == j]
        g = []
        for p in range(0, len(R), 2):
            seqs = [conv1(r[1], r[2], r[3], r[4], TMP[2 * q], TMP[2 * q + 1]) for q, r in enumerate(R[p:p + 2])]
            for z in zip(*seqs): g.extend(z)
        return g
    def place(k, depth=5):
        R = recs(k); G = []
        n = len(R)
        for s in range(n + depth):
            g = []
            if s - depth >= 0:
                _, I_, O, _, _ = R[s - depth]; t = TMP[(s - depth) % (depth + 1)]
                g += [f'    ds_write_b32 v{t}, v{I_} offset:{KEYS}',
                      f'    v_lshrrev_b32 v{t}, 1, v{t}',
                      f'    ds_write_b16 v{t}, v{O} offset:{CS}']
            if s < n:
                _, I_, O, _, _ = R[s]; t = TMP[s % (depth + 1)]
                g += [f'    v_lshrrev_b32 v{t}, 16, v{O}',
                      f'    ds_add_rtn_u32 v{t}, v{t}, v{FOUR}']
            G.append(g)
        return G
    def scan(k, mid1=(), mid2=()):
        a, b, c, d, f = TMP[0:5]
        wsr = 20 if k == 0 else 32
        L = [f'    ds_read_b32 v{a}, v{T4}',
             f'    v_mov_b32 v{c}, s{S_WAVE4}',
             f'    v_add_u32 v{a}, 4, v{a}',
             f'    v_and_b32 v{a}, -8, v{a}',
             f'    v_mov_b32 v{b}, v{a}']
        L += dpp_scan('v_add_u32', b)
        L += ['    s_mov_b32 exec_lo, 0', '    s_brev_b32 exec_hi, 1',
              f'    ds_write_b32 v{c}, v{b} offset:{SCR}',
              '    s_mov_b64 exec, -1',
              f'    v_and_b32 v{c}, 63, v{T4}']
        L += flat(mid1)
        L += bar()
        L += [f'    ds_read_b32 v{d}, v{c} offset:{SCR}',
              f'    v_and_b32 v{c}, 0xfff, v{T16}',
              f'    v_mov_b32 v{f}, v{d}']
        L += dpp_scan('v_add_u32', f, full=False)
        L += [f'    v_sub_u32 v{d}, v{f}, v{d}',
              f'    v_readlane_b32 s{S_TOT}, v{f}, 15',
              f'    v_readlane_b32 s{S_PRE}, v{d}, s{S_WAVE}',
              f'    v_mov_b32 v{d}, 0',
              f'    v_add_u32 v{b}, s{S_PRE}, v{b}',
              f'    v_sub_u32 v{a}, v{b}, v{a}',
              f'    ds_write_b32 v{T4}, v{a}',
              f'    ds_write_b32 v{b}, v{d} offset:{KEYS-4}',
              f'    v_lshrrev_b32 v{a}, 3, v{a}',
              f'    v_lshl_or_b32 v{a}, v{b}, 13, v{a}',
              f'    s_lshr_b32 s{wsr+2}, s{S_TOT}, 1',
              f'    s_add_u32 s{wsr+2}, s{wsr+2}, s{S_TOT}',
              f'    buffer_store_dword v{a}, v{c}, s[28:31], s{S_ROW} offen',
              f'    s_add_u32 s{S_ROW}, s{S_ROW}, 4096']
        L += flat(mid2)
        L += bar()
        return L
    def rb_setup():
        return [f'    v_add_u32 v{TMP[6]}, {KEYS}, v{T8}', f'    v_add_u32 v{TMP[7]}, {KEYS+65536}, v{T8}']
    def readback(j, r):
        kb = TMP[6] if j < 8 else TMP[7]
        return [f'    ds_read_b64 v[{r}:{r+1}], v{kb} offset:{8192*(j%8)}',
                f'    ds_read_b32 v{r+2}, v{T4} offset:{CS+4096*j}']
    def store(k, j, r):
        s, t = soff(j * 12288)
        wsr = 20 if k == 0 else 32
        return [t, f'    buffer_store_dwordx3 v[{r}:{r+2}], v{T12}, s[{wsr}:{wsr+3}], s{s} offen {ST}']

    L = []
    L += ['bin_kernel:', f'    s_cmp_ge_u32 s2, {NWG1}', '    s_cbranch_scc1 .Lk1_end']
    L += ['    s_load_dwordx4 s[4:7], s[0:1], 0', '    s_load_dwordx2 s[36:37], s[0:1], 16',
          '    s_load_dwordx2 s[38:39], s[0:1], 32', '    s_load_dwordx2 s[40:41], s[0:1], 104']
    L += stamp()
    L += [f'    v_lshlrev_b32 v{T16}, 4, v0', f'    v_lshlrev_b32 v{T8}, 3, v0', f'    v_lshlrev_b32 v{T4}, 2, v0',
          f'    v_mul_u32_u24 v{T12}, 12, v0', f'    v_lshrrev_b32 v6, 6, v0', f'    v_mov_b32 v{FOUR}, 0',
          f'    v_readfirstlane_b32 s{S_WAVE}, v6',
          f'    s_mul_i32 s54, s2, {2*CH*4}', f'    s_mul_i32 s55, s2, {2*CH*2}', f'    s_mul_i32 s56, s2, 25600',
          f'    s_mul_i32 s57, s2, {2*CHB}',
          f'    s_mov_b32 s{S_MO}, {MAG_OUT}', f'    s_mov_b32 s{S_MQ}, {MAG_Q}', f'    s_mov_b32 s{S_NEG}, -3125',
          f'    s_lshl_b32 s{S_WAVE4}, s{S_WAVE}, 2',
          f'    s_lshl_b32 s{S_ROW}, s2, 13', f'    s_and_b32 s58, s{S_WAVE}, 12', f'    s_add_u32 s{S_ROW}, s{S_ROW}, s58',
          '    s_waitcnt lgkmcnt(0)']
    L += srd(8, 6, 54, 2 * CH * 4) + srd(12, 36, 54, 2 * CH * 4) + srd(16, 38, 55, 2 * CH * 2) + srd(24, 4, 56, 25600)
    rows = [load_row(0, j) for j in range(7)] + [load_row(1, j) for j in range(7)]
    LA = P.get('k1_la', 2)
    L += flat(rows[0])
    L += [f'    ds_write_b32 v{T4}, v{FOUR}', f'    v_mov_b32 v{FOUR}, 4']
    L += [f'    buffer_load_dwordx4 v[{B}:{B+3}], v{T16}, s[24:27], 0 offen', '    s_movk_i32 s58, 0x4000',
          f'    buffer_load_dwordx4 v[{B+4}:{B+7}], v{T16}, s[24:27], s58 offen']
    L += srd(20, 40, 57, 0, WSB) + srd(32, 40, 57, 0, WSB + CHB) + srd(28, 40, None, MAXO + 32000, WSB + META)
    L += bar()
    for j in range(1, LA): L += flat(rows[j])
    nxt = LA
    def mred():
        R = []
        for i in range(8): R.append(f'    v_and_b32 v{B+i}, 0x7fff7fff, v{B+i}')
        for st in (4, 2, 1):
            for i in range(st): R.append(f'    v_pk_max_u16 v{B+i}, v{B+i}, v{B+i+st}')
        R += [f'    v_lshrrev_b32 v{B+1}, 16, v{B}', f'    v_and_b32 v{B}, 0xffff, v{B}', f'    v_max_u32 v{B}, v{B}, v{B+1}']
        R += dpp_scan('v_max_u32', B)
        R += [f'    s_lshl_b32 s58, s2, 6', f'    s_add_u32 s58, s58, {MAXO}', f'    v_mov_b32 v{B+1}, s{S_WAVE4}',
              '    s_mov_b32 exec_lo, 0', '    s_brev_b32 exec_hi, 1',
              f'    buffer_store_dword v{B}, v{B+1}, s[28:31], s58 offen', '    s_mov_b64 exec, -1']
        return R
    for j in range(7):
        L += flat(rows[nxt]); nxt += 1
        L += conv_row(0, j)
        if j == 0: L += mred()
    L += bar()
    rem = [g for r in rows[nxt:] for g in r]
    n1, n2, n3, n4 = P.get('k1_split', (1, 1, 7, 3))
    L += scan(0, rem[:n1], rem[n1:n1 + n2]); rem = rem[n1 + n2:]
    L += flat(interleave(place(0), rem[:n3]) if n3 else place(0)); rem = rem[n3:]
    L += rb_setup()
    L += bar()
    rb = [readback(j, A + 4 * j) for j in range(13)]
    L += [f'    v_mov_b32 v{TMP[0]}, 0', f'    ds_write_b32 v{T4}, v{TMP[0]}']
    L += flat(interleave(rb, rem[:n4]) if n4 and rem[:n4] else rb); rem = rem[n4:]
    L += bar()
    L += flat(rem)
    W0 = [store(0, j, A + 4 * j) for j in range(13)]
    w1, w2, w3 = P.get('k1_wsplit', (2, 1, 1))
    cv = [conv_row(1, j) for j in range(7)]
    L += flat(cv[:7 - w1])
    for z in range(w1): L += cv[7 - w1 + z] + W0[z]
    W0 = W0[w1:]
    L += bar()
    L += scan(1, W0[:w2], W0[w2:w2 + w3]); W0 = W0[w2 + w3:]
    L += flat(interleave(place(1), W0))
    L += rb_setup()
    L += bar()
    dst = [B + 4 * j for j in range(12)] + [A]
    for j in range(13): L += readback(j, dst[j])
    for j in range(13): L += store(1, j, dst[j])
    if prof:
        L += ['    s_waitcnt vmcnt(0)'] + stamp()
        L += prof_dump(pc[0], 40, PROF + WSB, S_WAVE, '.Lk1_pd')
    L += ['.Lk1_end:', '    s_endpgm']
    return process(L)

def prof_dump(n, wsp, off, S_WAVE, lab, base=60):
    L = ['    s_waitcnt lgkmcnt(0)', f'    s_cmp_lg_u32 s{S_WAVE}, 0', f'    s_cbranch_scc1 {lab}']
    L += srd(8, wsp, None, 65536, off)
    L += ['    s_lshl_b32 s12, s2, 7', '    s_mov_b64 exec, 1', '    v_mov_b32 v1, 0']
    for i in range(n):
        L += [f'    v_mov_b32 v2, s{base+2*i}', f'    buffer_store_dword v2, v1, s[8:11], s12 offen offset:{4*i}']
    L += [f'{lab}:']
    return L
```

```python
from asmlib import *
from k1 import dpp_scan, srd, CHB, META, MAXO, PROF, MAG_Q
import struct, math

def f2u(x): return struct.unpack('<I', struct.pack('<f', x))[0]
def bf16r(x):
    u = f2u(x); u += 0x7fff + ((u >> 16) & 1); u &= 0xffff0000
    return struct.unpack('<f', struct.pack('<I', u))[0]

STG = 13680
CNT, SCR, CS = 0, 6400, 6656
KEYS = CS + 2 * STG
ACC = KEYS + 4 * STG
LISTB = ACC
LQ = 3584 * 4
NMAX = 60
WLO = [(-(-q * (1 << 32) // MAG_Q)) >> 9 for q in range(4)]

def gen_k2(P, name):
    LD = P.get('k2_ld', 'nt'); prof = P.get('prof', 0); WSB = P.get('wsb', 0)
    OST = P.get('k2_st', '')
    POS0, T4, KB, FOUR, MHI, NH, PV = 0, 1, 2, 3, 4, 5, 7
    CP, MP, Y, AD, TT = 8, 10, 14, 22, 23
    RING = 24; NR = 3
    SP = [36, 37, 38, 39, 40, 41, 42, 43]
    X = [44, 72, 100, 44]
    S_WAVE, S_BK, S_TOT, S_MG, S_P21, S_ACC, S_T0, S_T1, S_T2 = 24, 25, 26, 30, 32, 33, 100, 101, 3
    W_RBF, W_SBF, W_DN, W_UP = 36, 52, 84, 92
    pc = [0]
    def stamp():
        if not prof: return []
        L = []
        if pc[0] > 0: L.append(f'    v_writelane_b32 v{PV}, s34, {pc[0]-1}')
        pc[0] += 1
        return L + ['    s_memrealtime s[34:35]']
    def bar(st=True): return ['    s_waitcnt lgkmcnt(0)', '    s_barrier'] + (stamp() if st else [])
    FULL = '    s_mov_b64 exec, -1'
    def tri(q, j): return X[q] + 4 * j
    def areg(q, j): return tri(q, j) + (3 if q == 3 else 0)

    def wloads():
        return ['    s_load_dwordx8 s[4:11], s[0:1], 56', '    s_waitcnt lgkmcnt(0)'] + wloads2()
    def wloads2():
        return [f'    s_load_dwordx16 s[{W_RBF}:{W_RBF+15}], s[4:5], 0',
                f'    s_load_dwordx16 s[{W_SBF}:{W_SBF+15}], s[6:7], 0',
                f'    s_load_dwordx16 s[{W_SBF+16}:{W_SBF+31}], s[6:7], 64',
                f'    s_load_dwordx8 s[{W_DN}:{W_DN+7}], s[8:9], 0',
                f'    s_load_dwordx8 s[{W_UP}:{W_UP+7}], s[10:11], 0']
    def wreg(o, rp):
        if o < 8:
            l, d = o >> 2, o & 3
            return W_SBF + ((4 * rp + l) * 2 + (d >> 1)) + (4 if d & 1 else 0)
        d = o - 8
        return W_RBF + ((2 * rp) * 2 + (d >> 1)) + (2 if d & 1 else 0)
    def repack():
        L = []
        for rp in range(4):
            for o in (0, 2, 4, 6, 8, 10):
                a, b = wreg(o, rp), wreg(o + 1, rp)
                L += [f'    s_pack_ll_b32_b16 s{S_T0}, s{a}, s{b}', f'    s_pack_hh_b32_b16 s{b}, s{a}, s{b}', f'    s_mov_b32 s{a}, s{S_T0}']
        return L

    def rec_load(q, j):
        t = tri(q, j)
        return [f'    buffer_load_dwordx3 v[{t}:{t+2}], v{areg(q,j)}, s[4:7], 0 offen {LD}']
    def coff(q): return CNT + 1600 * q - 4 * WLO[q]
    def hist(q, j):
        t = tri(q, j); a, b = SP[6], SP[7]
        return [f'    v_lshrrev_b32 v{a}, 19, v{t}', f'    v_lshrrev_b32 v{b}, 19, v{t+1}',
                f'    v_and_b32 v{a}, -4, v{a}', f'    v_and_b32 v{b}, -4, v{b}',
                f'    v_cmpx_ne_u32 vcc, 0, v{t}', f'    ds_add_u32 v{a}, v{FOUR} offset:{coff(q)}',
                f'    v_cmpx_ne_u32 vcc, 0, v{t+1}', f'    ds_add_u32 v{b}, v{FOUR} offset:{coff(q)}', FULL]
    def place(q, d=2):
        G = []
        for s in range(7 + d):
            g = []
            if s >= d:
                t = tri(q, s - d); a, b = SP[2 * ((s - d) % 3)], SP[2 * ((s - d) % 3) + 1]
                g += [f'    v_cmpx_ne_u32 vcc, 0, v{t}', f'    ds_write_b32 v{a}, v{t} offset:{KEYS}',
                      f'    v_lshrrev_b32 v{a}, 1, v{a}', f'    ds_write_b16 v{a}, v{t+2} offset:{CS}',
                      f'    v_cmpx_ne_u32 vcc, 0, v{t+1}', f'    ds_write_b32 v{b}, v{t+1} offset:{KEYS}',
                      f'    v_lshrrev_b32 v{b}, 1, v{b}', f'    ds_write_b16_d16_hi v{b}, v{t+2} offset:{CS}', FULL]
            if s < 7:
                t = tri(q, s); a, b = SP[2 * (s % 3)], SP[2 * (s % 3) + 1]
                g += [f'    v_lshrrev_b32 v{a}, 19, v{t}', f'    v_lshrrev_b32 v{b}, 19, v{t+1}',
                      f'    v_and_b32 v{a}, -4, v{a}', f'    v_and_b32 v{b}, -4, v{b}',
                      f'    v_cmpx_ne_u32 vcc, 0, v{t}', f'    ds_add_rtn_u32 v{a}, v{a}, v{FOUR} offset:{coff(q)}',
                      f'    v_cmpx_ne_u32 vcc, 0, v{t+1}', f'    ds_add_rtn_u32 v{b}, v{b}, v{FOUR} offset:{coff(q)}', FULL]
            G.append(g)
        return G
    def wscan(q):
        c = Y; a, s, o = AD, TT, CP
        wv = P.get('scanwave', [0, 5, 10, 15])[q]
        L = [f'    s_cmp_lg_u32 s{S_WAVE}, {wv}', f'    s_cbranch_scc1 .Lsc{q}',
             f'    v_and_b32 v{a}, 0xff, v{T4}', f'    v_lshlrev_b32 v{a}, 3, v{a}', '    s_bfm_b64 exec, 50, 0',
             f'    ds_read_b128 v[{c}:{c+3}], v{a} offset:{CNT+1600*q}',
             f'    ds_read_b128 v[{c+4}:{c+7}], v{a} offset:{CNT+1600*q+16}']
        for i in range(1, 8): L.append(f'    v_add_u32 v{c+i}, v{c+i}, v{c+i-1}')
        L.append(f'    v_mov_b32 v{s}, v{c+7}')
        L += dpp_scan('v_add_u32', s)
        L.append(f'    v_sub_u32 v{s}, v{s}, v{c+7}')
        for i in range(7, 0, -1): L.append(f'    v_add_u32 v{c+i}, v{s}, v{c+i-1}')
        L += [f'    v_mov_b32 v{c}, v{s}',
              f'    ds_write_b128 v{a}, v[{c}:{c+3}] offset:{CNT+1600*q}',
              f'    ds_write_b128 v{a}, v[{c+4}:{c+7}] offset:{CNT+1600*q+16}',
              FULL, '    s_waitcnt lgkmcnt(0)', f'.Lsc{q}:']
        return L
    def readback(q):
        G = [[f'    ds_read_b32 v{SP[6]}, v{FOUR} offset:{CNT+1600*q+399*4-4}']]
        for j in range(7):
            t = tri(q, j)
            G.append([f'    ds_read_b64 v[{t}:{t+1}], v{KB} offset:{8192*j}', f'    ds_read_b32 v{t+2}, v{T4} offset:{CS+4096*j}'])
        G.append([f'    v_readfirstlane_b32 s{S_TOT+q}, v{SP[6]}', f'    s_lshr_b32 s{S_TOT+q}, s{S_TOT+q}, 2'])
        return G
    gi = [0]; gmap = {}
    def gather(q, j):
        r = RING + 4 * (gi[0] % NR); gi[0] += 1; gmap[(q, j)] = r
        t = tri(q, j)
        return [f'    s_sub_u32 s{S_T0}, s{S_TOT+q}, {2048*j}',
                f'    v_lshrrev_b32 v{r}, 12, v{t}', f'    v_lshrrev_b32 v{r+2}, 12, v{t+1}',
                f'    v_cmpx_gt_i32 vcc, s{S_T0}, v{POS0}',
                f'    buffer_load_dwordx2 v[{r}:{r+1}], v{r}, s[8:11], 0 idxen',
                f'    buffer_load_dwordx2 v[{r+2}:{r+3}], v{r+2}, s[8:11], 0 idxen', FULL]
    def acc1(k, cc, h, g):
        mg = f's[{S_MG}:{S_MG+1}]'
        return [f'    v_cvt_f32_i32_sdwa v{CP}, sext(v{cc}) dst_sel:DWORD dst_unused:UNUSED_PAD src0_sel:WORD_{h}',
                f'    v_and_b32 v{AD}, 0xfff, v{k}',
                f'    v_fma_f32 v{CP+1}, v{CP}, v{CP}, v{NH}',
                f'    v_mad_u32_u24 v{AD}, v{AD}, 24, s{S_ACC}',
                f'    v_lshlrev_b32 v{MP}, 16, v{g}', f'    v_and_b32 v{MP+1}, v{MHI}, v{g}',
                f'    v_lshlrev_b32 v{MP+2}, 16, v{g+1}', f'    v_and_b32 v{MP+3}, v{MHI}, v{g+1}',
                f'    v_pk_fma_f32 v[{Y}:{Y+1}], v[{CP}:{CP+1}], v[{MP}:{MP+1}], {mg} op_sel_hi:[1,0,1]',
                f'    v_pk_fma_f32 v[{Y+2}:{Y+3}], v[{CP}:{CP+1}], v[{MP}:{MP+1}], {mg} op_sel:[0,1,0]',
                f'    v_pk_fma_f32 v[{Y+4}:{Y+5}], v[{CP}:{CP+1}], v[{MP+2}:{MP+3}], {mg} op_sel_hi:[1,0,1]',
                f'    v_pk_fma_f32 v[{Y+6}:{Y+7}], v[{CP}:{CP+1}], v[{MP+2}:{MP+3}], {mg} op_sel:[0,1,0]',
                f'    v_lshlrev_b32 v{Y+1}, 10, v{Y+1}',
                f'    v_lshlrev_b32 v{Y+5}, 10, v{Y+5}',
                f'    v_mad_u64_u32 v[{Y}:{Y+1}], vcc, v{Y+2}, s{S_P21}, v[{Y}:{Y+1}]',
                f'    v_lshl_or_b32 v{Y+6}, v{Y+6}, 9, 1',
                f'    ds_add_u64 v{AD}, v[{Y}:{Y+1}]',
                f'    v_mad_u64_u32 v[{Y+4}:{Y+5}], vcc, v{Y+3}, s{S_P21}, v[{Y+4}:{Y+5}]',
                f'    ds_add_u64 v{AD}, v[{Y+6}:{Y+7}] offset:16',
                f'    ds_add_u64 v{AD}, v[{Y+4}:{Y+5}] offset:8']
    def acc(q, j):
        t = tri(q, j); r = gmap[(q, j)]
        return ([f'    s_sub_u32 s{S_T0}, s{S_TOT+q}, {2048*j}', f'    s_sub_u32 s{S_T1}, s{S_TOT+q}, {2048*j+1}',
                 f'    v_cmpx_gt_i32 vcc, s{S_T0}, v{POS0}'] + acc1(t, t + 2, 0, r) +
                [f'    v_cmpx_gt_i32 vcc, s{S_T1}, v{POS0}'] + acc1(t + 1, t + 2, 1, r + 2) + [FULL])

    PR, MR, DR = 72, 120, 36
    def tail_loads():
        G = []
        for i in range(4):
            G.append([f'    v_lshlrev_b32 v{MR+2*i}, 1, v{T4}', f'    s_movk_i32 s{S_T0}, {8192*i}', f'    s_movk_i32 s{S_T1}, {2048*i}',
                      f'    buffer_load_dwordx2 v[{MR+2*i}:{MR+2*i+1}], v{MR+2*i}, s[12:15], s{S_T0} offen',
                      f'    buffer_load_ushort v{DR+i}, v{POS0}, s[16:19], s{S_T1} offen'])
        return G
    SQ = math.sqrt(10.0 * math.log2(math.e))
    def pstage(i):
        d = DR + i; t = Y; pk = MP
        G = [[f'    v_lshlrev_b32 v{d}, 16, v{d}', f'    v_mul_f32 v{d}, 0x{f2u(SQ):08x}, v{d}']]
        g = G[0]
        for r in range(8): g.append(f'    v_add_f32 v{t+r}, 0x{f2u(-bf16r(r/7.0)*SQ):08x}, v{d}' if r else f'    v_mov_b32 v{t}, v{d}')
        for r in range(8): g.append(f'    v_mul_f32 v{t+r}, v{t+r}, v{t+r}')
        for r in range(8): g.append(f'    v_exp_f32_e64 v{t+r}, -v{t+r}')
        for rp in range(4): g.append(f'    v_cvt_pk_bf16_f32 v{pk+rp}, v{t+2*rp}, v{t+2*rp+1}')
        for rp in range(4):
            for o in range(12):
                x = PR + 12 * i + o
                g.append(f'    v_dot2_f32_bf16 v{x}, v{pk+rp}, s{wreg(o,rp)}, ' + ('0' if rp == 0 else f'v{x}'))
        return g
    WD, WU = 52, 68
    def wunpack():
        L = []
        for z in range(8):
            L += [f'    s_lshl_b32 s{WD+2*z}, s{W_DN+z}, 16', f'    s_and_b32 s{WD+2*z+1}, s{W_DN+z}, 0xffff0000',
                  f'    s_lshl_b32 s{WU+2*z}, s{W_UP+z}, 16', f'    s_and_b32 s{WU+2*z+1}, s{W_UP+z}, 0xffff0000']
        return L
    AR, BR, WR, KC, NB, SUM, EA = 8, 16, 24, 44, 52, 40, 41
    def dec_consts():
        return [f'    s_lshr_b32 s{S_T0}, s{S_MG}, 23', f'    s_lshr_b32 s{S_T1}, s{S_MG+1}, 23',
                f'    s_sub_u32 s{S_T2}, s{S_T0}, 23', f'    s_lshl_b32 s{S_T2}, s{S_T2}, 23',
                f'    v_mov_b32 v{KC}, s{S_T2}',
                f'    v_mul_f32 v{KC}, 0x{f2u(1.0/32767):08x}, v{KC}',
                f'    v_mul_f32 v{KC+1}, 0x{f2u(32768.0/32767):08x}, v{KC}',
                f'    s_lshl_b32 s{S_T0}, s{S_T0}, 2', f'    s_lshl_b32 s{S_T1}, s{S_T1}, 2',
                f'    s_add_u32 s{S_T0}, s{S_T0}, 16384', f'    s_add_u32 s{S_T1}, s{S_T1}, 16384',
                f'    v_cvt_f32_u32 v{NB}, s{S_T0}', f'    v_cvt_f32_u32 v{NB+1}, s{S_T1}',
                f'    v_mul_f32 v{KC+2}, 0x{f2u(-16384.0):08x}, v{KC}',
                f'    v_mul_f32_e64 v{KC+3}, -v{NB}, v{KC}',
                f'    v_mul_f32_e64 v{KC+4}, -v{NB}, v{KC+1}',
                f'    v_mul_f32_e64 v{KC+5}, -v{NB+1}, v{KC+1}',
                f'    v_mul_f32 v{KC+6}, 0x{f2u(-16384.0):08x}, v{KC+1}',
                f'    v_mov_b32 v{SUM}, 0',
                f'    v_mul_u32_u24 v{EA}, 6, v{T4}', f'    v_add_u32 v{EA}, {ACC+24}, v{EA}']
    def front_fast(i):
        w = WR; n = WR + 6; M21 = 0x1fffff
        L = []
        if i == 2: L.append(f'    v_add_u32 v{EA}, {2*24576}, v{EA}')
        o = 24576 * (i & 1)
        L += [f'    ds_read_b64 v[{w+4}:{w+5}], v{EA} offset:{o+16}', f'    ds_read_b64 v[{w}:{w+1}], v{EA} offset:{o}',
              f'    ds_read_b64 v[{w+2}:{w+3}], v{EA} offset:{o+8}',
              f'    v_and_b32 v{n}, 0x1ff, v{w+4}',
              f'    v_add_u32 v{SUM}, v{SUM}, v{n}',
              f'    v_cmp_lt_u32 vcc, {NMAX}, v{n}',
              f'    v_cvt_f32_u32 v{n}, v{n}',
              f'    v_lshrrev_b32 v{AR+3}, 9, v{w+4}', f'    v_and_b32 v{AR+7}, 0x7fffff, v{w+5}',
              f'    s_cbranch_vccz .Lnp{i}', f'    v_add_u32 v{SUM}, 0x100000, v{SUM}', f'.Lnp{i}:']
        for z in range(5): L.append(f'    v_mul_f32 v{NB+z}, v{n}, v{KC+2+z}')
        L += [f'    v_and_b32 v{AR}, {M21}, v{w}', f'    v_alignbit_b32 v{AR+1}, v{w+1}, v{w}, 21', f'    v_lshrrev_b32 v{AR+4}, 10, v{w+1}',
              f'    v_and_b32 v{AR+2}, {M21}, v{w+2}', f'    v_alignbit_b32 v{AR+5}, v{w+3}, v{w+2}, 21', f'    v_lshrrev_b32 v{AR+6}, 10, v{w+3}',
              f'    v_and_b32 v{AR+1}, {M21}, v{AR+1}', f'    v_and_b32 v{AR+5}, {M21}, v{AR+5}']
        for z in range(8): L.append(f'    v_cvt_f32_u32 v{AR+z}, v{AR+z}')
        comb = [0, 1, 0, 0, 2, 2, 3, 4]
        for z in range(8): L.append(f'    v_fma_f32 v{AR+z}, v{AR+z}, v{KC+(z>>2)}, v{NB+comb[z]}')
        return L
    def front_slow(i):
        L = []
        if i == 2: L.append(f'    v_add_u32 v{EA}, 65536, v{EA}')
        o = 32768 * (i & 1)
        return L + [f'    ds_read_b128 v[{AR}:{AR+3}], v{EA} offset:{o}', f'    ds_read_b128 v[{AR+4}:{AR+7}], v{EA} offset:{o+16}']
    def bsel(k): return ('op_sel:[1,0,0]' if k & 1 else 'op_sel_hi:[0,1,1]')
    def back(i):
        L = []; p = PR + 12 * i; ag = WR; up = WR + 4; m = MR + 2 * i
        for k in range(4):
            for l in range(2):
                for dp in range(2):
                    b = BR + 4 * l + 2 * dp; a = AR + 4 * l + (k & 2); w = WD + 4 * k + 2 * dp
                    if k == 0: L.append(f'    v_pk_mul_f32 v[{b}:{b+1}], v[{a}:{a+1}], s[{w}:{w+1}] op_sel_hi:[0,1]')
                    else: L.append(f'    v_pk_fma_f32 v[{b}:{b+1}], v[{a}:{a+1}], s[{w}:{w+1}], v[{b}:{b+1}] {bsel(k)}')
        for d in range(4): L.append(f'    v_mul_f32 v{ag+d}, v{p+d}, v{BR+d}')
        for d in range(4): L.append(f'    v_fmac_f32 v{ag+d}, v{p+4+d}, v{BR+4+d}')
        L += [f'    v_lshlrev_b32 v{AR}, 16, v{m}', f'    v_and_b32 v{AR+1}, v{MHI}, v{m}',
              f'    v_lshlrev_b32 v{AR+2}, 16, v{m+1}', f'    v_and_b32 v{AR+3}, v{MHI}, v{m+1}']
        for k in range(4):
            for dp in range(2):
                b = up + 2 * dp; a = ag + (k & 2); w = WU + 4 * k + 2 * dp
                if k == 0: L.append(f'    v_pk_mul_f32 v[{b}:{b+1}], v[{a}:{a+1}], s[{w}:{w+1}] op_sel_hi:[0,1]')
                else: L.append(f'    v_pk_fma_f32 v[{b}:{b+1}], v[{a}:{a+1}], s[{w}:{w+1}], v[{b}:{b+1}] {bsel(k)}')
        for d in range(4): L.append(f'    v_fmac_f32 v{AR+d}, v{up+d}, v{p+8+d}')
        L += [f'    v_cvt_pk_bf16_f32 v{m}, v{AR}, v{AR+1}', f'    v_cvt_pk_bf16_f32 v{m+1}, v{AR+2}, v{AR+3}',
              f'    v_lshlrev_b32 v{BR}, 1, v{T4}', f'    s_movk_i32 s{S_T0}, {8192*i}',
              f'    buffer_store_dwordx2 v[{m}:{m+1}], v{BR}, s[20:23], s{S_T0} offen {OST}']
        return L
    def tail(front, tag):
        L = []
        for i in range(3): L += front(i) + back(i)
        L += [f'    s_cmp_lg_u32 s{S_WAVE}, 0', f'    s_cbranch_scc1 .Lt3{tag}', '    s_bfm_b64 exec, 53, 0']
        L += front(3) + back(3) + [FULL, '    s_waitcnt lgkmcnt(0)', f'.Lt3{tag}:']
        return L
    def pall(tag):
        L = []
        for i in range(3): L += pstage(i)
        L += [f'    s_waitcnt vmcnt(0)', f'    s_cmp_lg_u32 s{S_WAVE}, 0', f'    s_cbranch_scc1 .Lp3{tag}'] + pstage(3) + [f'.Lp3{tag}:']
        return L

    L = [name + ':', '    s_cmp_ge_u32 s2, 256', '    s_cbranch_scc1 .Lk2_end',
         '    s_load_dwordx2 s[26:27], s[0:1], 104', '    s_load_dwordx2 s[28:29], s[0:1], 0',
         '    s_load_dwordx2 s[30:31], s[0:1], 24', '    s_load_dwordx2 s[32:33], s[0:1], 88',
         '    s_load_dwordx8 s[4:11], s[0:1], 56']
    L += stamp()
    E0, MX, CB, T16, U, S, SI = 8, 12, 16, 17, 18, 19, 20
    L += [f'    v_lshrrev_b32 v{E0}, 6, v0', f'    v_lshlrev_b32 v{T16}, 4, v0', f'    v_and_b32 v{CB}, 0x1ff, v0',
          f'    v_readfirstlane_b32 s{S_WAVE}, v{E0}',
          f'    v_lshlrev_b32 v{E0}, 12, v{CB}',
          f'    s_and_b32 s{S_BK}, s2, 7', f'    s_lshl_b32 s{S_BK}, s{S_BK}, 5', f'    s_lshr_b32 s{S_T0}, s2, 3', f'    s_add_u32 s{S_BK}, s{S_BK}, s{S_T0}',
          f'    s_lshl_b32 s{S_T0}, s{S_BK}, 4', f'    s_and_b32 s{S_T1}, s{S_WAVE}, 8', f'    s_add_u32 s{S_T0}, s{S_T0}, s{S_T1}',
          '    s_waitcnt lgkmcnt(0)']
    L += srd(12, 26, None, 500 * 4096, WSB + META)
    L += [f'    buffer_load_dwordx2 v[{E0}:{E0+1}], v{E0}, s[12:15], s{S_T0} offen']
    L += srd(16, 26, None, 16000, WSB + META + MAXO)
    L += [f'    buffer_load_dwordx4 v[{MX}:{MX+3}], v{T16}, s[16:19], 0 offen']
    L += wloads2()
    L += srd(4, 26, None, 500 * CHB, WSB)
    L += ['    s_mov_b32 s8, s28', '    s_or_b32 s9, s29, 0x80000', '    s_mov_b32 s10, 800000', '    s_mov_b32 s11, 0x00020000']
    L += [f'    s_mul_i32 s{S_T0}, s{S_BK}, 25000', f'    s_mul_i32 s{S_T1}, s{S_BK}, 6250']
    L += srd(12, 28, S_T0, 25000) + srd(20, 32, S_T0, 25000) + srd(16, 30, S_T1, 6250)
    F = 24
    L += [f'    v_lshlrev_b32 v{T4}, 2, v0', f'    v_lshlrev_b32 v{KB}, 3, v0', f'    v_lshlrev_b32 v{POS0}, 1, v0',
          f'    v_mov_b32 v{F}, 0', f'    v_mov_b32 v{F+1}, 0',
          f'    ds_write_b64 v{KB}, v[{F}:{F+1}]',
          f'    v_bfrev_b32 v{F+4}, 1', f'    v_bfrev_b32 v{F+5}, 1', f'    v_bfrev_b32 v{F+6}, 1', f'    v_bfrev_b32 v{F+7}, 1',
          f'    v_add_u32 v{T16}, {LISTB}, v{T16}']
    for z in range(4): L.append(f'    ds_write_b128 v{T16}, v[{F+4}:{F+7}] offset:{16384*z}')
    L += [f'    v_add_u32 v{KB}, {KEYS}, v{KB}', f'    v_mov_b32 v{FOUR}, 4', f'    v_mov_b32 v{MHI}, 0xffff0000',
          f'    v_mov_b32 v{NH}, 0x{f2u(-32767.0*32767.0/2):08x}',
          f'    s_mov_b32 s{S_T0}, {CHB}', f'    v_mul_u32_u24 v{CB}, s{S_T0}, v{CB}',
          f'    s_mov_b32 s{S_P21}, 0x200000', f'    s_mov_b32 s{S_ACC}, {ACC}']
    L += bar(False)
    N0, N1, B0, B1 = 28, 29, 30, 31
    L += [f'    v_lshrrev_b32 v{N0}, 16, v{E0}', f'    v_lshrrev_b32 v{N1}, 16, v{E0+1}',
          f'    v_and_b32 v{E0}, 0xffff, v{E0}', f'    v_and_b32 v{E0+1}, 0xffff, v{E0+1}',
          f'    v_sub_u32 v{N0}, v{N0}, v{E0}', f'    v_sub_u32 v{N1}, v{N1}, v{E0+1}',
          f'    v_mad_u32_u24 v{B0}, v{E0}, 12, v{CB}', f'    v_mad_u32_u24 v{B1}, v{E0+1}, 12, v{CB}',
          f'    v_max_u32 v{E0}, v{N0}, v{N1}', f'    v_cmp_lt_u32 vcc, 64, v{E0}',
          f'    v_min_u32 v{N0}, 64, v{N0}', f'    v_min_u32 v{N1}, 64, v{N1}',
          f'    v_lshl_or_b32 v{SI+1}, v{N1}, 16, v{N0}',
          f'    v_add_u32 v{S}, 0x10001, v{SI+1}', f'    v_lshrrev_b32 v{S}, 1, v{S}', f'    v_and_b32 v{S}, 0x7fff7fff, v{S}',
          f'    v_mov_b32 v{SI}, v{S}',
          f'    v_max3_u32 v{MX}, v{MX}, v{MX+1}, v{MX+2}', f'    v_max_u32 v{MX}, v{MX}, v{MX+3}',
          f'    v_cndmask_b32 v{SI+2}, v{MX}, v{MHI}, vcc']
    for z in zip(dpp_scan('v_add_u32', SI), dpp_scan('v_add_u32', SI + 1), dpp_scan('v_max_u32', SI + 2)): L += list(z)
    L += [f'    s_lshl_b32 s{S_T0}, s{S_WAVE}, 4', f'    v_mov_b32 v{E0}, s{S_T0}',
          '    s_mov_b32 exec_lo, 0', '    s_brev_b32 exec_hi, 1',
          f'    ds_write_b96 v{E0}, v[{SI}:{SI+2}] offset:{SCR}', FULL,
          f'    v_and_b32 v{E0}, 60, v{T4}', f'    v_lshlrev_b32 v{E0}, 2, v{E0}',
          f'    v_sub_u32 v{S}, v{SI}, v{S}']
    L += bar()
    R = 12
    L += [f'    ds_read_b96 v[{R}:{R+2}], v{E0} offset:{SCR}', f'    v_mov_b32 v{R+3}, v{R}']
    for z in zip(dpp_scan('v_add_u32', R, False), dpp_scan('v_add_u32', R + 1, False), dpp_scan('v_max_u32', R + 2, False)): L += list(z)
    L += [f'    v_sub_u32 v{R+3}, v{R}, v{R+3}',
          f'    v_readlane_b32 s26, v{R}, 7', f'    v_readlane_b32 s27, v{R}, 15',
          f'    v_readlane_b32 s28, v{R+1}, 7', f'    v_readlane_b32 s29, v{R+1}, 15',
          f'    v_readlane_b32 s{S_MG}, v{R+2}, 15', f'    v_readlane_b32 s{S_T2}, v{R+3}, s{S_WAVE}',
          '    s_sub_u32 s27, s27, s26', '    s_sub_u32 s29, s29, s28',
          f'    s_cmp_ge_u32 s{S_WAVE}, 8', f'    s_cselect_b32 s{S_T0}, s26, 0', f'    s_cselect_b32 s{S_T1}, {2*LQ}, 0', f'    s_add_u32 s{S_T1}, s{S_T1}, {LISTB}',
          f'    s_sub_u32 s{S_T2}, s{S_T2}, s{S_T0}',
          f'    v_add_u32 v{S}, s{S_T2}, v{S}']
    for r, cap in ((26, 3584), (27, 3584), (28, STG // 2), (29, STG // 2)):
        L += [f'    s_and_b32 s{S_T0}, s{r}, 0xffff', f'    s_lshr_b32 s{r}, s{r}, 16', f'    s_max_u32 s{r}, s{r}, s{S_T0}',
              f'    s_cmp_gt_u32 s{r}, {cap}', '    s_cbranch_scc1 .Lslow']
    L += [f'    s_lshr_b32 s{S_MG}, s{S_MG}, 7', f'    s_cmp_gt_u32 s{S_MG}, 215', '    s_cbranch_scc1 .Lslow',
          f'    s_lshl_b32 s{S_MG}, s{S_MG}, 23',
          f'    s_add_u32 s{S_MG+1}, s{S_MG}, {(39<<23)+0x4000}', f'    s_add_u32 s{S_MG}, s{S_MG}, {(25<<23)+0x4000}']
    A0, A1, RM = 8, 9, 10
    L += [f'    v_and_b32 v{A0}, 0xffff, v{S}', f'    v_lshrrev_b32 v{A1}, 16, v{S}',
          f'    v_lshl_add_u32 v{A0}, v{A0}, 2, s{S_T1}', f'    v_lshl_add_u32 v{A1}, v{A1}, 2, s{S_T1}']
    for z, (a, b, n) in enumerate(((A0, B0, N0), (A1, B1, N1))):
        o = LQ * z
        L += [f'    v_mov_b32 v{RM}, v{n}', f'    v_cmpx_lt_i32 vcc, 0, v{RM}', f'.Lll{z}:',
              f'    ds_write_b32 v{a}, v{b} offset:{o}', f'    v_add_u32 v{RM}, -2, v{RM}',
              f'    v_add_u32 v{a}, 4, v{a}', f'    v_add_u32 v{b}, 24, v{b}',
              f'    v_cmpx_lt_i32 vcc, 0, v{RM}', f'    s_cbranch_execnz .Lll{z}', FULL,
              f'    v_add_u32 v{a}, -4, v{a}', f'    v_add_u32 v{b}, {(1<<30)-24}, v{b}',
              f'    v_cmpx_ne_u32 vcc, 0, v{RM}', f'    ds_write_b32 v{a}, v{b} offset:{o}', FULL]
    LA_, LC = 11, 12
    L += [f'    v_and_b32 v{LA_}, -4, v{POS0}', f'    v_add_u32 v{LA_}, {LISTB}, v{LA_}',
          f'    v_bfe_u32 v{LC}, v{POS0}, 1, 1', f'    s_mov_b32 s{S_T0}, {(1<<30)+12}', f'    v_mul_lo_u32 v{LC}, v{LC}, s{S_T0}',
          f'    v_mov_b32 v{LC+1}, 0xbfffffff']
    L += repack()
    L += bar()
    def lread(q): return [f'    ds_read_b32 v{areg(q,j)}, v{LA_} offset:{LQ*q+2048*j}' for j in range(7)]
    def lfix(q, j): return [f'    v_add_u32 v{areg(q,j)}, v{LC}, v{areg(q,j)}', f'    v_and_b32 v{areg(q,j)}, v{LC+1}, v{areg(q,j)}']
    L += lread(0) + lread(1)
    for j in range(7): L += lfix(0, j) + rec_load(0, j)
    L += lread(2) + lread(3)
    for q in (1, 2, 3):
        for j in range(7): L += lfix(q, j)
    L1 = [rec_load(1, j) for j in range(7)]; L2 = [rec_load(2, j) for j in range(7)]; L3 = [rec_load(3, j) for j in range(7)]
    a1, a2, a3 = P.get('k2_l1', (2, 1, 4))
    H0 = [hist(0, j) for j in range(7)]
    L += flat(H0[:7 - a1])
    for z in range(a1): L += L1[z] + H0[7 - a1 + z]
    L += bar()
    L += wscan(0)
    L += [f'    v_mov_b32 v{Y+z}, 0' for z in range(4)] + [f'    v_lshl_add_u32 v{AD}, v{POS0}, 3, s{S_ACC}']
    for z in range(4): L.append(f'    ds_write_b128 v{AD}, v[{Y}:{Y+3}] offset:{16384*z}')
    L += [f'    v_add_u32 v{AD}, 65536, v{AD}', f'    v_cmpx_gt_u32 vcc, {(75024-65536)//8}, v{POS0}',
          f'    ds_write_b128 v{AD}, v[{Y}:{Y+3}]', FULL,
          f'    ds_write_b32 v{Y}, v{Y} offset:{SCR}']
    L += flat(L1[a1:a1 + a2])
    L += bar()
    L += flat(interleave(place(0), L1[a1 + a2:]))
    L += bar()
    L += flat(readback(0))
    L += gather(0, 0) + gather(0, 1)
    for q in range(4):
        def GA(j):
            g = []
            if j + 2 < 7: g += gather(q, j + 2)
            elif q < 3: g += gather(q + 1, j + 2 - 7)
            return g + acc(q, j)
        if q < 3:
            ex = L2 if q == 0 else (L3 if q == 1 else [])
            H = [hist(q + 1, j) for j in range(7)]
            L += flat(interleave([GA(0), GA(1)], H))
            L += bar()
            L += wscan(q + 1)
            L += GA(2)
            L += bar()
            st = [[GA(3), GA(4)], place(q + 1)]
            if ex: st.append(ex)
            L += flat(interleave(*st))
            L += bar()
            L += flat(readback(q + 1))
            L += GA(5) + GA(6)
        else:
            L += flat(interleave([GA(j) for j in range(7)], tail_loads()))
    L += pall('f') + wunpack() + dec_consts()
    L += bar()
    L += tail(front_fast, 'f')
    L += dpp_scan('v_add_u32', SUM)
    L += ['    s_mov_b32 exec_lo, 0', '    s_brev_b32 exec_hi, 1', f'    ds_add_u32 v{FOUR}, v{SUM} offset:{SCR-4}', FULL]
    L += [f'    s_add_u32 s26, s26, s27', '    s_add_u32 s28, s28, s29', '    s_add_u32 s26, s26, s28']
    L += bar()
    L += [f'    ds_read_b32 v{SUM}, v{FOUR} offset:{SCR-4}', f'    v_readfirstlane_b32 s27, v{SUM}',
          '    s_cmp_lg_u32 s26, s27', '    s_cbranch_scc1 .Lslow']
    if prof:
        L += ['    s_waitcnt vmcnt(0)'] + stamp() + ['    s_waitcnt lgkmcnt(0)'] + stamp()
        L += [f'    s_cmp_lg_u32 s{S_WAVE}, 0', '    s_cbranch_scc1 .Lk2_end', '    s_load_dwordx2 s[26:27], s[0:1], 104', '    s_waitcnt lgkmcnt(0)']
        L += srd(8, 26, None, 65536, WSB + PROF + 0x10000)
        L += ['    s_lshl_b32 s12, s2, 7', '    s_bfm_b64 exec, 32, 0', f'    buffer_store_dword v{PV}, v{T4}, s[8:11], s12 offen']
    L += ['.Lk2_end:', '    s_endpgm']
    L += ['.Lslow:', '    s_waitcnt vmcnt(0) lgkmcnt(0)', '    s_barrier']
    if P.get('dbgslow'):
        L += ['    s_load_dwordx2 s[26:27], s[0:1], 96', '    s_waitcnt lgkmcnt(0)', '    v_mov_b32 v8, 0', '    v_mov_b32 v9, 1',
              '    s_mov_b64 exec, 1', '    global_atomic_add v8, v9, s[26:27]', FULL]
    L += [f'    v_mov_b32 v{Y+z}, 0' for z in range(4)] + [f'    v_lshlrev_b32 v{AD}, 2, v{T4}']
    for z in range(4): L.append(f'    ds_write_b128 v{AD}, v[{Y}:{Y+3}] offset:{16384*z}')
    L.append(f'    v_add_u32 v{AD}, 65536, v{AD}')
    for z in range(3): L.append(f'    ds_write_b128 v{AD}, v[{Y}:{Y+3}] offset:{16384*z}')
    L += ['    s_load_dwordx4 s[28:31], s[0:1], 56', '    s_load_dwordx2 s[26:27], s[0:1], 72', '    s_load_dwordx2 s[32:33], s[0:1], 80',
          '    s_waitcnt lgkmcnt(0)',
          f'    s_load_dwordx16 s[{W_RBF}:{W_RBF+15}], s[28:29], 0',
          f'    s_load_dwordx16 s[{W_SBF}:{W_SBF+15}], s[30:31], 0',
          f'    s_load_dwordx16 s[{W_SBF+16}:{W_SBF+31}], s[30:31], 64',
          f'    s_load_dwordx8 s[{W_DN}:{W_DN+7}], s[26:27], 0',
          f'    s_load_dwordx8 s[{W_UP}:{W_UP+7}], s[32:33], 0',
          '    s_waitcnt lgkmcnt(0)',
          '    s_load_dwordx2 s[26:27], s[0:1], 104']
    L += repack()
    L += flat(tail_loads()) + pall('s') + wunpack()
    L += ['    s_waitcnt vmcnt(0) lgkmcnt(0)', '    s_barrier']
    LN, UO, T3, G2 = 24, 25, 28, 32
    L += [f'    s_lshl_b32 s{S_T0}, s{S_BK}, 4', f'    s_add_u32 s{S_T0}, s{S_T0}, {WSB+META}',
          f'    s_add_u32 s26, s26, s{S_T0}', '    s_addc_u32 s27, s27, 0',
          f'    s_mov_b32 s40, s{S_WAVE}', f'    v_bfe_u32 v{LN}, v{T4}, 2, 6',
          '.Lsl_c:', '    s_lshl_b32 s42, s40, 12', '    s_load_dwordx4 s[36:39], s[26:27], s42',
          f'    s_mul_i32 s44, s40, {CHB}', '    s_mov_b32 s41, 0', '    s_waitcnt lgkmcnt(0)',
          '.Lsl_q:', '    s_and_b32 s42, s36, 0xffff', '    s_lshr_b32 s43, s36, 16',
          '.Lsl_u:', '    s_cmp_ge_u32 s42, s43', '    s_cbranch_scc1 .Lsl_nq',
          f'    v_add_u32 v{UO}, s42, v{LN}', f'    v_cmpx_gt_u32 vcc, s43, v{UO}',
          f'    v_mul_u32_u24 v{UO}, 12, v{UO}',
          f'    buffer_load_dwordx3 v[{T3}:{T3+2}], v{UO}, s[4:7], s44 offen']
    for h in range(2):
        k = T3 + h
        L += [f'    v_lshrrev_b32 v{G2}, 12, v{k}', f'    v_cmpx_ne_u32 vcc, 0, v{k}',
              f'    buffer_load_dwordx2 v[{G2}:{G2+1}], v{G2}, s[8:11], 0 idxen',
              f'    v_cvt_f32_i32_sdwa v{CP}, sext(v{T3+2}) dst_sel:DWORD dst_unused:UNUSED_PAD src0_sel:WORD_{h}',
              f'    v_mul_f32 v{CP}, 0x{f2u(1.0/32767):08x}, v{CP}',
              f'    v_add_f32 v{CP+1}, v{CP}, v{CP}', f'    v_fma_f32 v{CP+1}, v{CP+1}, v{CP}, -1.0',
              f'    v_and_b32 v{AD}, 0xfff, v{k}', f'    v_lshlrev_b32 v{AD}, 5, v{AD}',
              f'    v_lshlrev_b32 v{MP}, 16, v{G2}', f'    v_and_b32 v{MP+1}, v{MHI}, v{G2}',
              f'    v_lshlrev_b32 v{MP+2}, 16, v{G2+1}', f'    v_and_b32 v{MP+3}, v{MHI}, v{G2+1}']
        for z in range(8):
            L += [f'    v_mul_f32 v{Y+z}, v{CP+(z>>2)}, v{MP+(z&3)}', f'    ds_add_f32 v{AD}, v{Y+z} offset:{4*z}']
    L += [FULL, '    s_waitcnt vmcnt(0) lgkmcnt(0)', '    s_add_u32 s42, s42, 64', '    s_branch .Lsl_u',
          '.Lsl_nq:', '    s_mov_b32 s36, s37', '    s_mov_b32 s37, s38', '    s_mov_b32 s38, s39',
          '    s_add_u32 s41, s41, 1', '    s_cmp_lt_u32 s41, 4', '    s_cbranch_scc1 .Lsl_q',
          '    s_add_u32 s40, s40, 16', '    s_cmp_lt_u32 s40, 500', '    s_cbranch_scc1 .Lsl_c',
          f'    v_lshlrev_b32 v{EA}, 3, v{T4}', f'    v_add_u32 v{EA}, 32, v{EA}',
          '    s_waitcnt vmcnt(0) lgkmcnt(0)', '    s_barrier']
    L += tail(front_slow, 's')
    L += ['    s_endpgm']
    return process(L)
```

```python
from asmlib import *

NWG1 = 250
CH = 25600
CHB = 159744
META = 0x5000000
MAXO = 0x200000
PROF = 0x6000000
MAG_OUT = 1374390
MAG_Q = 21474

def dpp_scan(op, r, full=True):
    L = []
    for s in (1, 2, 4, 8):
        L.append(f'    {op}_dpp v{r}, v{r}, v{r} row_shr:{s} row_mask:0xf bank_mask:0xf')
    if full:
        L.append(f'    {op}_dpp v{r}, v{r}, v{r} row_bcast:15 row_mask:0xa bank_mask:0xf')
        L.append(f'    {op}_dpp v{r}, v{r}, v{r} row_bcast:31 row_mask:0xc bank_mask:0xf')
    return L

def srd(d, plo, addreg, nrec, extra=0):
    L = []
    if addreg is None:
        L.append(f'    s_add_u32 s{d}, s{plo}, {extra}')
        L.append(f'    s_addc_u32 s{d+1}, s{plo+1}, 0')
    else:
        L.append(f'    s_add_u32 s{d}, s{plo}, s{addreg}')
        L.append(f'    s_addc_u32 s{d+1}, s{plo+1}, 0')
        if extra:
            L.append(f'    s_add_u32 s{d}, s{d}, {extra}')
            L.append(f'    s_addc_u32 s{d+1}, s{d+1}, 0')
    L.append(f'    s_mov_b32 s{d+2}, {nrec}')
    L.append(f'    s_mov_b32 s{d+3}, 0x00020000')
    return L

def gen_k1(P):
    LD = P.get('k1_ld', 'nt'); ST = P.get('k1_st', 'sc1'); prof = P.get('prof', 0)
    WSB = P.get('wsb', 0); IL = P.get('k1_il', 1)
    CS, KEYS, SCR = 4096, 57344, 4096
    T16, T8, T4, FOUR, T12 = 1, 2, 3, 4, 5
    TMP = [6, 7, 8, 9, 10, 11, 127, 0]
    A, B, ANG = 12, 64, 114
    def rin(k, j): return (A if k == 0 else B) + (4 * j if j < 6 else 48)
    def rout(k, j): return (A if k == 0 else B) + (24 + 4 * j if j < 6 else 49)
    def rang(j): return ANG + 2 * j
    S_WAVE, S_WAVE4, S_MO, S_MQ, S_NEG, S_TOT, S_PRE, S_ROW = 46, 47, 48, 49, 50, 51, 52, 53
    sro = [0]
    def soff(val):
        r = 42 + sro[0] % 4; sro[0] += 1
        return r, f'    s_mov_b32 s{r}, {val}'
    pc = [0]
    def stamp():
        if not prof: return []
        r = 60 + 2 * pc[0]; pc[0] += 1
        return [f'    s_memrealtime s[{r}:{r+1}]']
    def bar(): return ['    s_waitcnt lgkmcnt(0)', '    s_barrier'] + stamp()

    def load_row(k, j):
        rec = k * CH + j * 4096
        g = []
        if IL:
            if j < 6: rec = (k * 6 + j) * NWG1 * 4096
            else:
                rec = 12 * NWG1 * 4096 + k * NWG1 * 1024
                r, _ = soff(0); t = f'    s_sub_u32 s{r}, {rec*4}, s59'
                g.append([t, f'    buffer_load_dword v{rin(k,j)}, v{T4}, s[8:11], s{r} offen {LD}'])
                g.append([t, f'    buffer_load_dword v{rout(k,j)}, v{T4}, s[12:15], s{r} offen {LD}'])
                r, _ = soff(0)
                g.append([f'    s_sub_u32 s{r}, {rec*4}, s59', f'    s_lshr_b32 s{r}, s{r}, 1', f'    v_lshrrev_b32 v{rang(j)}, 1, v{T4}',
                          f'    buffer_load_ushort v{rang(j)}, v{rang(j)}, s[16:19], s{r} offen {LD}'])
                return g
        r, t = soff(rec * 4)
        if j < 6:
            g.append([t, f'    buffer_load_dwordx4 v[{rin(k,j)}:{rin(k,j)+3}], v{T16}, s[8:11], s{r} offen {LD}'])
            g.append([t, f'    buffer_load_dwordx4 v[{rout(k,j)}:{rout(k,j)+3}], v{T16}, s[12:15], s{r} offen {LD}'])
            r, t = soff(rec * 2)
            g.append([t, f'    buffer_load_dwordx2 v[{rang(j)}:{rang(j)+1}], v{T8}, s[16:19], s{r} offen {LD}'])
        else:
            g.append([t, f'    buffer_load_dword v{rin(k,j)}, v{T4}, s[8:11], s{r} offen {LD}'])
            g.append([t, f'    buffer_load_dword v{rout(k,j)}, v{T4}, s[12:15], s{r} offen {LD}'])
            r, t = soff(rec * 2)
            g.append([t, f'    v_lshrrev_b32 v{rang(j)}, 1, v{T4}',
                      f'    buffer_load_ushort v{rang(j)}, v{rang(j)}, s[16:19], s{r} offen {LD}'])
        return g
    def recs(k):
        R = []
        for j in range(7):
            for i in range(4 if j < 6 else 1):
                R.append((j, rin(k, j) + i, rout(k, j) + i, rang(j) + i // 2, i & 1))
        return R
    def conv1(I_, O, a, hi, ta, tb):
        return [
            f'    v_mul_hi_u32_u24 v{ta}, s{S_MO}, v{O}',
            f'    v_mul_hi_u32_u24 v{tb}, s{S_MQ}, v{I_}',
            f'    v_mad_i32_i24 v{O}, v{ta}, s{S_NEG}, v{O}',
            f'    v_lshl_add_u32 v{ta}, v{tb}, 8, v{ta}',
            (f'    v_and_b32 v{tb}, 0xffff0000, v{a}' if hi else f'    v_lshlrev_b32 v{tb}, 16, v{a}'),
            f'    v_lshl_add_u32 v{I_}, v{I_}, 12, v{O}',
            f'    v_mul_f32 v{tb}, 0.15915494, v{tb}',
            f'    v_lshlrev_b32 v{O}, 2, v{ta}',
            f'    v_fract_f32 v{tb}, v{tb}',
            f'    ds_add_u32 v{O}, v{FOUR}',
            f'    v_cos_f32 v{tb}, v{tb}',
            f'    v_add_u32 v{I_}, 1, v{I_}',
            f'    v_cvt_pknorm_i16_f32 v{tb}, v{tb}, 0',
            f'    v_lshl_or_b32 v{O}, v{ta}, 18, v{tb}',
        ]
    def conv_row(k, j):
        R = [r for r in recs(k) if r[0] == j]
        g = []
        for p in range(0, len(R), 2):
            seqs = [conv1(r[1], r[2], r[3], r[4], TMP[2 * q], TMP[2 * q + 1]) for q, r in enumerate(R[p:p + 2])]
            for z in zip(*seqs): g.extend(z)
        return g
    def place(k, depth=5):
        R = recs(k); G = []
        n = len(R)
        for s in range(n + depth):
            g = []
            if s - depth >= 0:
                _, I_, O, _, _ = R[s - depth]; t = TMP[(s - depth) % (depth + 1)]
                g += [f'    ds_write_b32 v{t}, v{I_} offset:{KEYS}',
                      f'    v_lshrrev_b32 v{t}, 1, v{t}',
                      f'    ds_write_b16 v{t}, v{O} offset:{CS}']
            if s < n:
                _, I_, O, _, _ = R[s]; t = TMP[s % (depth + 1)]
                g += [f'    v_lshrrev_b32 v{t}, 16, v{O}',
                      f'    ds_add_rtn_u32 v{t}, v{t}, v{FOUR}']
            G.append(g)
        return G
    def scan(k, mid1=(), mid2=()):
        a, b, c, d, f = TMP[0:5]
        wsr = 20 if k == 0 else 32
        L = [f'    ds_read_b32 v{a}, v{T4}',
             f'    v_mov_b32 v{c}, s{S_WAVE4}',
             f'    v_add_u32 v{a}, 4, v{a}',
             f'    v_and_b32 v{a}, -8, v{a}',
             f'    v_mov_b32 v{b}, v{a}']
        L += dpp_scan('v_add_u32', b)
        L += ['    s_mov_b32 exec_lo, 0', '    s_brev_b32 exec_hi, 1',
              f'    ds_write_b32 v{c}, v{b} offset:{SCR}',
              '    s_mov_b64 exec, -1',
              f'    v_and_b32 v{c}, 63, v{T4}']
        L += flat(mid1)
        L += bar()
        L += [f'    ds_read_b32 v{d}, v{c} offset:{SCR}',
              f'    v_and_b32 v{c}, 0xfff, v{T16}',
              f'    v_mov_b32 v{f}, v{d}']
        L += dpp_scan('v_add_u32', f, full=False)
        L += [f'    v_sub_u32 v{d}, v{f}, v{d}',
              f'    v_readlane_b32 s{S_TOT}, v{f}, 15',
              f'    v_readlane_b32 s{S_PRE}, v{d}, s{S_WAVE}',
              f'    v_mov_b32 v{d}, 0',
              f'    v_add_u32 v{b}, s{S_PRE}, v{b}',
              f'    v_sub_u32 v{a}, v{b}, v{a}',
              f'    ds_write_b32 v{T4}, v{a}',
              f'    ds_write_b32 v{b}, v{d} offset:{KEYS-4}',
              f'    v_lshrrev_b32 v{a}, 3, v{a}',
              f'    v_lshl_or_b32 v{a}, v{b}, 13, v{a}',
              f'    s_lshr_b32 s{wsr+2}, s{S_TOT}, 1',
              f'    s_add_u32 s{wsr+2}, s{wsr+2}, s{S_TOT}',
              f'    buffer_store_dword v{a}, v{c}, s[28:31], s{S_ROW} offen',
              f'    s_add_u32 s{S_ROW}, s{S_ROW}, 4096']
        L += flat(mid2)
        L += bar()
        return L
    def rb_setup():
        return [f'    v_add_u32 v{TMP[6]}, {KEYS}, v{T8}', f'    v_add_u32 v{TMP[7]}, {KEYS+65536}, v{T8}']
    def readback(j, r):
        kb = TMP[6] if j < 8 else TMP[7]
        return [f'    ds_read_b64 v[{r}:{r+1}], v{kb} offset:{8192*(j%8)}',
                f'    ds_read_b32 v{r+2}, v{T4} offset:{CS+4096*j}']
    def store(k, j, r):
        s, t = soff(j * 12288)
        wsr = 20 if k == 0 else 32
        return [t, f'    buffer_store_dwordx3 v[{r}:{r+2}], v{T12}, s[{wsr}:{wsr+3}], s{s} offen {ST}']

    L = []
    L += ['bin_kernel:', f'    s_cmp_ge_u32 s2, {NWG1}', '    s_cbranch_scc1 .Lk1_end']
    L += ['    s_load_dwordx4 s[4:7], s[0:1], 0', '    s_load_dwordx2 s[36:37], s[0:1], 16',
          '    s_load_dwordx2 s[38:39], s[0:1], 32', '    s_load_dwordx2 s[40:41], s[0:1], 104']
    L += stamp()
    L += [f'    v_lshlrev_b32 v{T16}, 4, v0', f'    v_lshlrev_b32 v{T8}, 3, v0', f'    v_lshlrev_b32 v{T4}, 2, v0',
          f'    v_mul_u32_u24 v{T12}, 12, v0', f'    v_lshrrev_b32 v6, 6, v0', f'    v_mov_b32 v{FOUR}, 0',
          f'    v_readfirstlane_b32 s{S_WAVE}, v6',
          f'    s_mul_i32 s54, s2, {2*CH*4}', f'    s_mul_i32 s55, s2, {2*CH*2}', f'    s_mul_i32 s56, s2, 25600',
          f'    s_mul_i32 s57, s2, {2*CHB}',
          f'    s_mov_b32 s{S_MO}, {MAG_OUT}', f'    s_mov_b32 s{S_MQ}, {MAG_Q}', f'    s_mov_b32 s{S_NEG}, -3125',
          f'    s_lshl_b32 s{S_WAVE4}, s{S_WAVE}, 2',
          f'    s_lshl_b32 s{S_ROW}, s2, 13', f'    s_and_b32 s58, s{S_WAVE}, 12', f'    s_add_u32 s{S_ROW}, s{S_ROW}, s58',
          '    s_waitcnt lgkmcnt(0)']
    if IL:
        L += ['    s_lshl_b32 s54, s2, 14', '    s_lshl_b32 s55, s2, 13', '    s_mul_i32 s59, s2, 12288']
        L += srd(8, 6, 54, 0) + srd(12, 36, 54, 0) + srd(16, 38, 55, 0) + srd(24, 4, 56, 25600)
        L += ['    s_sub_u32 s10, 51200000, s54', '    s_sub_u32 s14, 51200000, s54', '    s_sub_u32 s18, 25600000, s55']
    else:
        L += srd(8, 6, 54, 2 * CH * 4) + srd(12, 36, 54, 2 * CH * 4) + srd(16, 38, 55, 2 * CH * 2) + srd(24, 4, 56, 25600)
    rows = [load_row(0, j) for j in range(7)] + [load_row(1, j) for j in range(7)]
    LA = P.get('k1_la', 2)
    L += flat(rows[0])
    L += [f'    ds_write_b32 v{T4}, v{FOUR}', f'    v_mov_b32 v{FOUR}, 4']
    L += [f'    buffer_load_dwordx4 v[{B}:{B+3}], v{T16}, s[24:27], 0 offen', '    s_movk_i32 s58, 0x4000',
          f'    buffer_load_dwordx4 v[{B+4}:{B+7}], v{T16}, s[24:27], s58 offen']
    L += srd(20, 40, 57, 0, WSB) + srd(32, 40, 57, 0, WSB + CHB) + srd(28, 40, None, MAXO + 32000, WSB + META)
    L += bar()
    for j in range(1, LA): L += flat(rows[j])
    nxt = LA
    def mred():
        R = []
        for i in range(8): R.append(f'    v_and_b32 v{B+i}, 0x7fff7fff, v{B+i}')
        for st in (4, 2, 1):
            for i in range(st): R.append(f'    v_pk_max_u16 v{B+i}, v{B+i}, v{B+i+st}')
        R += [f'    v_lshrrev_b32 v{B+1}, 16, v{B}', f'    v_and_b32 v{B}, 0xffff, v{B}', f'    v_max_u32 v{B}, v{B}, v{B+1}']
        R += dpp_scan('v_max_u32', B)
        R += [f'    s_lshl_b32 s58, s2, 6', f'    s_add_u32 s58, s58, {MAXO}', f'    v_mov_b32 v{B+1}, s{S_WAVE4}',
              '    s_mov_b32 exec_lo, 0', '    s_brev_b32 exec_hi, 1',
              f'    buffer_store_dword v{B}, v{B+1}, s[28:31], s58 offen', '    s_mov_b64 exec, -1']
        return R
    for j in range(7):
        L += flat(rows[nxt]); nxt += 1
        L += conv_row(0, j)
        if j == 0: L += mred()
    L += bar()
    rem = [g for r in rows[nxt:] for g in r]
    n1, n2, n3, n4 = P.get('k1_split', (1, 1, 7, 3))
    L += scan(0, rem[:n1], rem[n1:n1 + n2]); rem = rem[n1 + n2:]
    L += flat(interleave(place(0), rem[:n3]) if n3 else place(0)); rem = rem[n3:]
    L += rb_setup()
    L += bar()
    rb = [readback(j, A + 4 * j) for j in range(13)]
    L += [f'    v_mov_b32 v{TMP[0]}, 0', f'    ds_write_b32 v{T4}, v{TMP[0]}']
    L += flat(interleave(rb, rem[:n4]) if n4 and rem[:n4] else rb); rem = rem[n4:]
    L += bar()
    L += flat(rem)
    W0 = [store(0, j, A + 4 * j) for j in range(13)]
    w1, w2, w3 = P.get('k1_wsplit', (2, 1, 1))
    cv = [conv_row(1, j) for j in range(7)]
    L += flat(cv[:7 - w1])
    for z in range(w1): L += cv[7 - w1 + z] + W0[z]
    W0 = W0[w1:]
    L += bar()
    L += scan(1, W0[:w2], W0[w2:w2 + w3]); W0 = W0[w2 + w3:]
    L += flat(interleave(place(1), W0))
    L += rb_setup()
    L += bar()
    dst = [B + 4 * j for j in range(12)] + [A]
    for j in range(13): L += readback(j, dst[j])
    for j in range(13): L += store(1, j, dst[j])
    if prof:
        L += ['    s_waitcnt vmcnt(0)'] + stamp()
        L += prof_dump(pc[0], 40, PROF + WSB, S_WAVE, '.Lk1_pd')
    L += ['.Lk1_end:', '    s_endpgm']
    return process(L)

def prof_dump(n, wsp, off, S_WAVE, lab, base=60):
    L = ['    s_waitcnt lgkmcnt(0)', f'    s_cmp_lg_u32 s{S_WAVE}, 0', f'    s_cbranch_scc1 {lab}']
    L += srd(8, wsp, None, 65536, off)
    L += ['    s_lshl_b32 s12, s2, 7', '    s_mov_b64 exec, 1', '    v_mov_b32 v1, 0']
    for i in range(n):
        L += [f'    v_mov_b32 v2, s{base+2*i}', f'    buffer_store_dword v2, v1, s[8:11], s12 offen offset:{4*i}']
    L += [f'{lab}:']
    return L
```

```python
from asmlib import *
from k1 import dpp_scan, srd, CHB, META, MAXO, PROF, MAG_Q
import struct, math

def f2u(x): return struct.unpack('<I', struct.pack('<f', x))[0]
def bf16r(x):
    u = f2u(x); u += 0x7fff + ((u >> 16) & 1); u &= 0xffff0000
    return struct.unpack('<f', struct.pack('<I', u))[0]

STG = 13680
CNT, SCR, CS = 0, 6400, 6656
KEYS = CS + 2 * STG
ACC = KEYS + 4 * STG
LISTB = ACC
LQ = 3584 * 4
NMAX = 60
WLO = [(-(-q * (1 << 32) // MAG_Q)) >> 9 for q in range(4)]

def per(q, A, B, C):
    t = ' | '.join((A, B, C)) + ' |'
    return t.replace('Q', str(q)).replace('O', str(q - 1)).replace('N', str(q + 1)).replace('Z', str(q + 2))
SCHED = {}
SCHED[0] = ' '.join([
    per(0, 'r0 g00 g01 hN0 hN1 g02 a00 hN2 hN3 hN4 g03 a01 hN5 hN6', 'sN gQ4 aQ2', 'pN0 lZ0 pN1 lZ1 gQ5 aQ3 pN2 lZ2 pN3 pN4 lZ3 pN5 lZ4 pN6 gQ6 aQ4 lZ5 pN7 lZ6 pN8'),
    per(1, 'rQ gQ0 aO5 gQ1 aO6 hN0 hN1 gQ2 aQ0 hN2 hN3 hN4 gQ3 aQ1 hN5 hN6', 'sN gQ4 aQ2', 'pN0 lZ0 pN1 lZ1 gQ5 aQ3 pN2 lZ2 pN3 pN4 lZ3 pN5 lZ4 pN6 gQ6 aQ4 lZ5 pN7 lZ6 pN8'),
    per(2, 'rQ gQ0 aO5 gQ1 aO6 hN0 hN1 gQ2 aQ0 hN2 hN3 hN4 gQ3 aQ1 hN5 hN6', 'sN gQ4 aQ2', 'pN0 pN1 gQ5 aQ3 pN2 pN3 pN4 pN5 pN6 gQ6 aQ4 pN7 pN8'),
    'r3 g30 a25 g31 a26 g32 a30 t0 g33 a31 g34 a32 t1 g35 a33 g36 a34 t2 a35 t3 a36 P0 P1 P2 P3'])
SCHED[1] = ' '.join([
    per(0, 'r0 g00 hN0 hN1 hN2 hN3 g01 hN4 hN5 hN6 a00 g02', 'sN aQ1 gQ3', 'pN0 lZ0 pN1 lZ1 pN2 lZ2 pN3 lZ3 aQ2 lZ4 pN4 lZ5 pN5 lZ6 pN6 aQ3 pN7 pN8 gQ4'),
    per(1, 'gO5 gO6 rQ aO4 gQ0 aO5 aO6 hN0 hN1 hN2 gQ1 hN3 hN4 hN5 hN6 aQ0 gQ2', 'sN aQ1 gQ3', 'pN0 lZ0 pN1 lZ1 pN2 lZ2 pN3 lZ3 aQ2 lZ4 pN4 lZ5 pN5 lZ6 pN6 aQ3 pN7 pN8 gQ4'),
    per(2, 'gO5 gO6 rQ aO4 gQ0 aO5 aO6 hN0 hN1 hN2 hN3 hN4 hN5 hN6 gQ1', 'sN aQ0 gQ2', 'gQ3 pN0 pN1 pN2 pN3 aQ1 gQ4 pN4 aQ2 pN5 pN6 pN7 pN8 gQ5'),
    'a23 g26 r3 a24 g30 a25 g31 a26 t0 t1 t2 t3 g32 a30 P0 g33 a31 P1 g34 a32 P2 g35 a33 P3 g36 a34 a35 a36'])
FIN = 'g25 g26 r3 a24 g30 a25 a26 t0 t1 t2 t3 g31 a30 g32 P0 a31 g33 P1 a32 g34 P2 a33 g35 P3 a34 g36 a35 a36'
P2 = per(2, 'gO5 gO6 rQ aO4 gQ0 aO5 aO6 hN0 hN1 hN2 hN3 hN4 hN5 hN6 gQ1', 'sN aQ0 gQ2', 'pN0 pN1 pN2 gQ3 pN3 aQ1 pN4 aQ2 pN5 gQ4 pN6 pN7 pN8 aQ3')
SCHED[2] = ' '.join([
    per(0, 'r0 g00 lZ0 hN0 hN1 hN2 hN3 g01 lZ1 hN4 hN5 hN6 a00', 'gQ2 lZ2 sN aQ1', 'gQ3 lZ3 pN0 pN1 pN2 pN3 aQ2 gQ4 lZ4 pN4 pN5 pN6 aQ3 pN7 pN8 lZ5 lZ6'),
    per(1, 'gO5 gO6 rQ aO4 lZ0 gQ0 aO5 aO6 lZ1 hN0 hN1 hN2 gQ1 lZ2 hN3 hN4 hN5 hN6 aQ0', 'gQ2 lZ3 sN aQ1', 'gQ3 lZ4 pN0 pN1 pN2 pN3 aQ2 gQ4 lZ5 pN4 pN5 pN6 aQ3 pN7 pN8 lZ6'),
    P2, FIN])
SCHED[3] = ' '.join([
    per(0, 'r0 g00 hN0 hN1 hN2 hN3 g01 hN4 hN5 hN6 a00', 'gQ2 sN aQ1', 'gQ3 pN0 pN1 aQ2 lZ0 pN2 lZ1 pN3 lZ2 pN4 lZ3 pN5 lZ4 pN6 lZ5 pN7 lZ6 pN8 gQ4 aQ3'),
    per(1, 'gO5 gO6 rQ aO4 gQ0 aO5 aO6 hN0 hN1 hN2 gQ1 hN3 hN4 hN5 hN6 aQ0', 'gQ2 sN aQ1', 'gQ3 pN0 pN1 aQ2 lZ0 pN2 lZ1 pN3 lZ2 pN4 lZ3 pN5 lZ4 pN6 lZ5 pN7 lZ6 pN8 gQ4 aQ3'),
    P2, FIN])
SCHED[4] = SCHED[3].replace(FIN, 'g25 g26 r3 a24 T g30 a25 a26 T t0 t1 t2 t3 g31 a30 T g32 P0 a31 T g33 P1 a32 T g34 P2 a33 T g35 P3 a34 T g36 a35 T a36')
SCHED[5] = SCHED[3].replace(FIN, 'g25 g26 r3 a24 T g30 a25 a26 T g31 a30 T g32 a31 T g33 a32 T g34 a33 T g35 a34 T g36 a35 T a36 t0 t1 t2 t3 P0 P1 P2 P3')
SCHED[6] = SCHED[3].replace(FIN, 'g25 g26 r3 a24 T g30 a25 g31 a26 T g32 a30 T g33 a31 T g34 a32 T g35 a33 T g36 a34 T a35 T a36 t0 t1 t2 t3 P0 P1 P2 P3')
def autoprio(sched, mode):
    out = []
    for iv in sched.split('|'):
        toks = iv.split()
        gs = [k for k, t in enumerate(toks) if t[0] == 'g' and t[2] != '6']
        n = len(gs); o = ['S3']; cur = 3; c = 0
        for k, t in enumerate(toks):
            o.append(t)
            if k in gs:
                c += 1
                p = max(0, 3 - (c * 3 + n - 1) // n) if n > 3 else 3 - c
                if p != cur: o.append(f'S{p}'); cur = p
        out.append(' '.join(o))
    return ' | '.join(out)
SCHED[7] = autoprio(SCHED[4], 0)
SCHED[8] = autoprio(SCHED[3], 0).split('|')
SCHED[8] = ' | '.join(SCHED[8][:-1]) + ' | S3 g25 S2 g26 r3 a24 T g30 S1 a25 a26 T t0 t1 t2 t3 g31 B S3 a30 T g32 S2 P0 a31 T g33 B S3 P1 a32 T g34 S2 P2 a33 T g35 S1 P3 a34 T g36 a35 T a36'
SCHED[9] = autoprio(SCHED[2], 0)
FIN2 = 'g25 g26 r3 a24 g30 a25 a26 M0 P0 g31 P1 a30 g32 P2 a31 g33 P3 a32 g34 a33 g35 a34 g36 a35 a36'
HN = 'hN0 hN1 hN2 hN3 hN4 hN5 hN6'
A0 = 'r0 g00 ' + HN; A1 = 'gO5 gO6 rQ aO4 gQ0 aO5 aO6 ' + HN
B1 = 'gQ1 sN aQ0'
C1 = 'gQ2 pN0 pN1 pN2 aQ1 gQ3 pN3 pN4 pN5 aQ2 pN6 pN7 gQ4 pN8 aQ3'
A0L = 'r0 g00 lZ0 hN0 lZ1 hN1 lZ2 hN2 lZ3 hN3 lZ4 hN4 lZ5 hN5 lZ6 hN6 E'
A1L = 'gO5 gO6 rQ aO4 gQ0 aO5 aO6 lZ0 hN0 lZ1 hN1 lZ2 hN2 lZ3 hN3 lZ4 hN4 lZ5 hN5 lZ6 hN6 E'
C1a = 'gQ2 pN0 pN1 aQ1 lZ0 pN2 lZ1 pN3 lZ2 pN4 lZ3 lZ4 pN5 lZ5 lZ6 E gQ3 aQ2 pN6 pN7 gQ4 pN8 aQ3'
C1b = 'gQ2 pN0 pN1 aQ1 gQ3 pN2 pN3 aQ2 gQ4 aQ3 lZ0 pN4 lZ1 pN5 lZ2 pN6 lZ3 pN7 lZ4 pN8 lZ5 lZ6 E'
def mk(a0, a1, b, c):
    return ' '.join([per(0, a0, b, c).replace('E', ''), per(1, a1, b, c).replace('E', 'e0 e1 e2 e3'), per(2, A1, B1, C1), FIN2])
SCHED[10] = mk(A0L, A1L, B1, C1)
SCHED[11] = mk(A0, A1, B1, C1a)
SCHED[12] = mk(A0, A1, B1, C1b)
for k in (10, 11, 12): SCHED[k + 10] = autoprio(SCHED[k], 0)

def gen_k2(P, name):
    svs = P.get('svs') or [P.get('sv', 0)]
    progs = []
    for v, sv in enumerate(svs):
        Q = dict(P); Q['sv'] = sv
        progs.append(gen_k2v(Q, name, v))
    def cut(pr):
        a = pr.index(';@R0'); b = pr.index(';@R1')
        return pr[:a], pr[a + 1:b], pr[b + 1:]
    pro, _, tl = cut(progs[0])
    V = len(svs)
    out = list(pro)
    if V > 1:
        sel = P.get('vsel', 3)
        out += [f'    s_lshr_b32 s100, s2, {sel}']
        if V == 3: out += ['    s_mul_i32 s101, s100, 86', '    s_lshr_b32 s101, s101, 8', '    s_mul_i32 s101, s101, 3', '    s_sub_u32 s100, s100, s101']
        else: out += [f'    s_and_b32 s100, s100, {V-1}']
        for v in range(1, V): out += [f'    s_cmp_eq_u32 s100, {v}', f'    s_cbranch_scc1 .Lvar{v}']
    for v in range(V):
        assert cut(progs[v])[0] == pro
        out += [f'.Lvar{v}:'] + cut(progs[v])[1]
        if v < V - 1: out += ['    s_branch .Lvend']
    out += ['.Lvend:'] + tl
    return out

def gen_k2v(P, name, VAR):
    LD = P.get('k2_ld', 'nt'); prof = P.get('prof', 0); WSB = P.get('wsb', 0)
    OST = P.get('k2_st', '')
    POS0, T4, KB, FOUR, MHI, NH, PV = 0, 1, 2, 3, 4, 5, 7
    LAY = P.get('lay', 0); PD = {0: 0, 1: 1024, 2: 64}[LAY]; PQ = 6 if LAY == 2 else POS0
    CP, MP, Y, AD, TT = 8, 10, 14, 22, 23
    RING = 24; NR = 3
    SP = [36, 37, 38, 39, 40, 41, 42, 43]
    X = [44, 72, 100, 44]
    S_WAVE, S_BK, S_TOT, S_MG, S_P21, S_ACC, S_T0, S_T1, S_T2 = 24, 25, 26, 30, 32, 33, 100, 101, 3
    W_RBF, W_SBF, W_DN, W_UP = 36, 52, 84, 92
    pc = [0]
    def stamp():
        if not prof: return []
        L = []
        if pc[0] > 0: L.append(f'    v_writelane_b32 v{PV}, s34, {pc[0]-1}')
        pc[0] += 1
        return L + ['    s_memrealtime s[34:35]']
    def bar(st=True): return ['    s_waitcnt lgkmcnt(0)', '    s_barrier'] + (stamp() if st else [])
    FULL = '    s_mov_b64 exec, -1'
    def tri(q, j): return X[q] + 4 * j
    def areg(q, j): return tri(q, j) + (3 if q == 3 else 0)

    def wloads():
        return ['    s_load_dwordx8 s[4:11], s[0:1], 56', '    s_waitcnt lgkmcnt(0)'] + wloads2()
    def wloads2():
        return [f'    s_load_dwordx16 s[{W_RBF}:{W_RBF+15}], s[4:5], 0',
                f'    s_load_dwordx16 s[{W_SBF}:{W_SBF+15}], s[6:7], 0',
                f'    s_load_dwordx16 s[{W_SBF+16}:{W_SBF+31}], s[6:7], 64',
                f'    s_load_dwordx8 s[{W_DN}:{W_DN+7}], s[8:9], 0',
                f'    s_load_dwordx8 s[{W_UP}:{W_UP+7}], s[10:11], 0']
    def wreg(o, rp):
        if o < 8:
            l, d = o >> 2, o & 3
            return W_SBF + ((4 * rp + l) * 2 + (d >> 1)) + (4 if d & 1 else 0)
        d = o - 8
        return W_RBF + ((2 * rp) * 2 + (d >> 1)) + (2 if d & 1 else 0)
    def repack():
        L = []
        for rp in range(4):
            for o in (0, 2, 4, 6, 8, 10):
                a, b = wreg(o, rp), wreg(o + 1, rp)
                L += [f'    s_pack_ll_b32_b16 s{S_T0}, s{a}, s{b}', f'    s_pack_hh_b32_b16 s{b}, s{a}, s{b}', f'    s_mov_b32 s{a}, s{S_T0}']
        return L

    def rec_load(q, j):
        t = tri(q, j)
        return [f'    buffer_load_dwordx3 v[{t}:{t+2}], v{areg(q,j)}, s[4:7], 0 offen {LD}']
    PFA = [75, 79, 83, 87]; PFM = 91; PFI = 95; DUM = 6
    PFLD = P.get('pf_ld', '')
    def pf_info():
        return [f'    s_lshl_b32 s{S_T0}, s{S_WAVE}, 5', f'    s_lshr_b32 s{S_T1}, s2, 3', f'    s_add_u32 s{S_T0}, s{S_T0}, s{S_T1}',
                f'    s_mul_i32 s{S_T2}, s{S_T0}, {CHB}', f'    s_lshl_b32 s{S_T0}, s{S_T0}, 12',
                f'    s_and_b32 s{S_T1}, s2, 7', f'    s_lshl_b32 s{S_T1}, s{S_T1}, 9', f'    s_add_u32 s{S_T0}, s{S_T0}, s{S_T1}',
                f'    v_and_b32 v{PFI}, 3, v0', f'    v_bfe_u32 v{PFM}, v0, 2, 1', f'    v_mul_u32_u24 v{PFM}, 124, v{PFM}',
                f'    v_add_lshl_u32 v{PFI}, v{PFI}, v{PFM}, 2',
                f'    buffer_load_dword v{PFI}, v{PFI}, s[12:15], s{S_T0} offen',
                f'    v_and_b32 v{PFA[3]}, 63, v0', f'    v_lshlrev_b32 v{PFA[3]}, 7, v{PFA[3]}',
                f'    s_lshr_b32 s{S_T1}, s2, 3', f'    s_mul_i32 s{S_T1}, s{S_T1}, 6400', f'    s_mul_i32 s{S_T0}, s{S_WAVE}, 400',
                f'    s_add_u32 s{S_T0}, s{S_T0}, s{S_T1}',
                f'    v_lshrrev_b32 v{PFM}, 3, v{PFA[3]}', f'    v_cmp_gt_u32 vcc, 400, v{PFM}', f'    v_add_u32 v{PFM}, s{S_T0}, v{PFM}',
                f'    v_mov_b32 v{PFA[0]}, 0x1000000', f'    v_cndmask_b32 v{PFM}, v{PFA[0]}, v{PFM}, vcc']
    def pf_addr():
        L = []
        for q in range(4):
            L += [f'    v_readlane_b32 s{S_T0}, v{PFI}, {q}', f'    v_readlane_b32 s{S_T1}, v{PFI}, {4+q}',
                  f'    s_and_b32 s{S_T0}, s{S_T0}, 0xffff', f'    s_lshr_b32 s{S_T1}, s{S_T1}, 16',
                  f'    s_mul_i32 s{S_T0}, s{S_T0}, 12', f'    s_mul_i32 s{S_T1}, s{S_T1}, 12',
                  f'    s_and_b32 s{S_T0}, s{S_T0}, -128', f'    s_sub_u32 s{S_T1}, s{S_T1}, s{S_T0}',
                  f'    s_add_u32 s{S_T0}, s{S_T0}, s{S_T2}',
                  f'    v_cmp_gt_u32 vcc, s{S_T1}, v{PFA[3]}', f'    v_add_u32 v{PFA[q]}, s{S_T0}, v{PFA[3]}',
                  f'    v_cndmask_b32 v{PFA[q]}, -16, v{PFA[q]}, vcc']
            if q == 0: L += pf_rec(0)
        return L
    def pf_rec(q):
        if not P.get('pf', 0) & 1: return []
        return [f'    buffer_load_dword v{DUM}, v{PFA[q]}, s[4:7], 0 offen {PFLD} ; nodep']
    def pf_m(q):
        if not P.get('pf', 0) & 2: return []
        return [f'    buffer_load_dword v{DUM}, v{PFM}, s[8:11], 0 idxen ; nodep', f'    v_add_u32 v{PFM}, 200000, v{PFM}']
    def coff(q): return CNT + 1600 * q - 4 * WLO[q]
    def hist(q, j):
        t = tri(q, j); a, b = SP[6], SP[7]
        return [f'    v_lshrrev_b32 v{a}, 19, v{t}', f'    v_lshrrev_b32 v{b}, 19, v{t+1}',
                f'    v_and_b32 v{a}, -4, v{a}', f'    v_and_b32 v{b}, -4, v{b}',
                f'    v_cmpx_ne_u32 vcc, 0, v{t}', f'    ds_add_u32 v{a}, v{FOUR} offset:{coff(q)}',
                f'    v_cmpx_ne_u32 vcc, 0, v{t+1}', f'    ds_add_u32 v{b}, v{FOUR} offset:{coff(q)}', FULL]
    def place(q, d=2):
        G = []
        for s in range(7 + d):
            g = []
            if s >= d:
                t = tri(q, s - d); a, b = SP[2 * ((s - d) % 3)], SP[2 * ((s - d) % 3) + 1]
                g += [f'    v_cmpx_ne_u32 vcc, 0, v{t}', f'    ds_write_b32 v{a}, v{t} offset:{KEYS}',
                      f'    v_lshrrev_b32 v{a}, 1, v{a}', f'    ds_write_b16 v{a}, v{t+2} offset:{CS}',
                      f'    v_cmpx_ne_u32 vcc, 0, v{t+1}', f'    ds_write_b32 v{b}, v{t+1} offset:{KEYS}',
                      f'    v_lshrrev_b32 v{b}, 1, v{b}', f'    ds_write_b16_d16_hi v{b}, v{t+2} offset:{CS}', FULL]
            if s < 7:
                t = tri(q, s); a, b = SP[2 * (s % 3)], SP[2 * (s % 3) + 1]
                g += [f'    v_lshrrev_b32 v{a}, 19, v{t}', f'    v_lshrrev_b32 v{b}, 19, v{t+1}',
                      f'    v_and_b32 v{a}, -4, v{a}', f'    v_and_b32 v{b}, -4, v{b}',
                      f'    v_cmpx_ne_u32 vcc, 0, v{t}', f'    ds_add_rtn_u32 v{a}, v{a}, v{FOUR} offset:{coff(q)}',
                      f'    v_cmpx_ne_u32 vcc, 0, v{t+1}', f'    ds_add_rtn_u32 v{b}, v{b}, v{FOUR} offset:{coff(q)}', FULL]
            G.append(g)
        return G
    def wscan(q):
        c = Y; a, s, o = AD, TT, CP
        wv = P.get('scanwave', [0, 5, 10, 15])[q]
        L = [f'    s_cmp_lg_u32 s{S_WAVE}, {wv}', f'    s_cbranch_scc1 .Lsc{q}_{VAR if q else 0}',
             f'    v_and_b32 v{a}, 0xff, v{T4}', f'    v_lshlrev_b32 v{a}, 3, v{a}', '    s_bfm_b64 exec, 50, 0',
             f'    ds_read_b128 v[{c}:{c+3}], v{a} offset:{CNT+1600*q}',
             f'    ds_read_b128 v[{c+4}:{c+7}], v{a} offset:{CNT+1600*q+16}']
        for i in range(1, 8): L.append(f'    v_add_u32 v{c+i}, v{c+i}, v{c+i-1}')
        L.append(f'    v_mov_b32 v{s}, v{c+7}')
        L += dpp_scan('v_add_u32', s)
        L.append(f'    v_sub_u32 v{s}, v{s}, v{c+7}')
        for i in range(7, 0, -1): L.append(f'    v_add_u32 v{c+i}, v{s}, v{c+i-1}')
        L += [f'    v_mov_b32 v{c}, v{s}',
              f'    ds_write_b128 v{a}, v[{c}:{c+3}] offset:{CNT+1600*q}',
              f'    ds_write_b128 v{a}, v[{c+4}:{c+7}] offset:{CNT+1600*q+16}',
              FULL, '    s_waitcnt lgkmcnt(0)', f'.Lsc{q}_{VAR if q else 0}:']
        return L
    def readback(q):
        G = [[f'    ds_read_b32 v{SP[6]}, v{FOUR} offset:{CNT+1600*q+399*4-4}']]
        if LAY: G = [[f'    ds_read_b32 v{SP[7]}, v{FOUR} offset:{CNT+1600*q+399*4-4}']]
        for j in range(7):
            t = tri(q, j)
            if LAY:
                G.append([f'    ds_read2st64_b32 v[{t}:{t+1}], v{KB} offset0:{32*j} offset1:{32*j+PD//64}',
                          f'    ds_read_u16 v{t+2}, v{PQ} offset:{CS+4096*j}', f'    ds_read_u16 v{SP[j]}, v{PQ} offset:{CS+4096*j+2*PD}'])
            else:
                G.append([f'    ds_read_b64 v[{t}:{t+1}], v{KB} offset:{8192*j}', f'    ds_read_b32 v{t+2}, v{T4} offset:{CS+4096*j}'])
        if LAY:
            G.append([f'    v_readfirstlane_b32 s{S_TOT+q}, v{SP[7]}', f'    s_lshr_b32 s{S_TOT+q}, s{S_TOT+q}, 1'])
            G.append([f'    v_lshl_or_b32 v{tri(q,j)+2}, v{SP[j]}, 16, v{tri(q,j)+2}' for j in range(7)])
        else: G.append([f'    v_readfirstlane_b32 s{S_TOT+q}, v{SP[6]}', f'    s_lshr_b32 s{S_TOT+q}, s{S_TOT+q}, 2'])
        return G
    gi = [0]; gmap = {}
    def gather(q, j):
        r = RING + 4 * (gi[0] % NR); gi[0] += 1
        assert r not in gmap.values(), (q, j)
        gmap[(q, j)] = r
        t = tri(q, j)
        if LAY:
            return [f'    s_sub_u32 s{S_T0}, s{S_TOT+q}, {4096*j}', f'    s_sub_u32 s{S_T1}, s{S_TOT+q}, {4096*j+2*PD}',
                f'    v_lshrrev_b32 v{r}, 12, v{t}', f'    v_lshrrev_b32 v{r+2}, 12, v{t+1}',
                f'    v_cmpx_gt_i32 vcc, s{S_T0}, v{PQ}',
                f'    buffer_load_dwordx2 v[{r}:{r+1}], v{r}, s[8:11], 0 idxen',
                f'    v_cmpx_gt_i32 vcc, s{S_T1}, v{PQ}',
                f'    buffer_load_dwordx2 v[{r+2}:{r+3}], v{r+2}, s[8:11], 0 idxen', FULL]
        return [f'    s_sub_u32 s{S_T0}, s{S_TOT+q}, {2048*j}',
                f'    v_lshrrev_b32 v{r}, 12, v{t}', f'    v_lshrrev_b32 v{r+2}, 12, v{t+1}',
                f'    v_cmpx_gt_i32 vcc, s{S_T0}, v{POS0}',
                f'    buffer_load_dwordx2 v[{r}:{r+1}], v{r}, s[8:11], 0 idxen',
                f'    buffer_load_dwordx2 v[{r+2}:{r+3}], v{r+2}, s[8:11], 0 idxen', FULL]
    def acc1(k, cc, h, g):
        mg = f's[{S_MG}:{S_MG+1}]'
        return [f'    v_cvt_f32_i32_sdwa v{CP}, sext(v{cc}) dst_sel:DWORD dst_unused:UNUSED_PAD src0_sel:WORD_{h}',
                f'    v_and_b32 v{AD}, 0xfff, v{k}',
                f'    v_fma_f32 v{CP+1}, v{CP}, v{CP}, v{NH}',
                f'    v_mad_u32_u24 v{AD}, v{AD}, 24, s{S_ACC}',
                f'    v_lshlrev_b32 v{MP}, 16, v{g}', f'    v_and_b32 v{MP+1}, v{MHI}, v{g}',
                f'    v_lshlrev_b32 v{MP+2}, 16, v{g+1}', f'    v_and_b32 v{MP+3}, v{MHI}, v{g+1}',
                f'    v_pk_fma_f32 v[{Y}:{Y+1}], v[{CP}:{CP+1}], v[{MP}:{MP+1}], {mg} op_sel_hi:[1,0,1]',
                f'    v_pk_fma_f32 v[{Y+2}:{Y+3}], v[{CP}:{CP+1}], v[{MP}:{MP+1}], {mg} op_sel:[0,1,0]',
                f'    v_pk_fma_f32 v[{Y+4}:{Y+5}], v[{CP}:{CP+1}], v[{MP+2}:{MP+3}], {mg} op_sel_hi:[1,0,1]',
                f'    v_pk_fma_f32 v[{Y+6}:{Y+7}], v[{CP}:{CP+1}], v[{MP+2}:{MP+3}], {mg} op_sel:[0,1,0]',
                f'    v_lshlrev_b32 v{Y+1}, 10, v{Y+1}',
                f'    v_lshlrev_b32 v{Y+5}, 10, v{Y+5}',
                f'    v_mad_u64_u32 v[{Y}:{Y+1}], vcc, v{Y+2}, s{S_P21}, v[{Y}:{Y+1}]',
                f'    v_lshl_or_b32 v{Y+6}, v{Y+6}, 9, 1',
                f'    ds_add_u64 v{AD}, v[{Y}:{Y+1}]',
                f'    v_mad_u64_u32 v[{Y+4}:{Y+5}], vcc, v{Y+3}, s{S_P21}, v[{Y+4}:{Y+5}]',
                f'    ds_add_u64 v{AD}, v[{Y+6}:{Y+7}] offset:16',
                f'    ds_add_u64 v{AD}, v[{Y+4}:{Y+5}] offset:8']
    def acc(q, j):
        t = tri(q, j); r = gmap.pop((q, j))
        o0, o1 = (4096 * j, 4096 * j + 2 * PD) if LAY else (2048 * j, 2048 * j + 1)
        return ([f'    s_sub_u32 s{S_T0}, s{S_TOT+q}, {o0}', f'    s_sub_u32 s{S_T1}, s{S_TOT+q}, {o1}',
                 f'    v_cmpx_gt_i32 vcc, s{S_T0}, v{PQ}'] + acc1(t, t + 2, 0, r) +
                [f'    v_cmpx_gt_i32 vcc, s{S_T1}, v{PQ}'] + acc1(t + 1, t + 2, 1, r + 2) + [FULL])

    PR, MR, DR = 72, 120, 36
    def tail_loads():
        G = []
        for i in range(4):
            G.append([f'    v_lshlrev_b32 v{MR+2*i}, 1, v{T4}', f'    s_movk_i32 s{S_T0}, {8192*i}', f'    s_movk_i32 s{S_T1}, {2048*i}',
                      f'    buffer_load_dwordx2 v[{MR+2*i}:{MR+2*i+1}], v{MR+2*i}, s[12:15], s{S_T0} offen',
                      f'    buffer_load_ushort v{DR+i}, v{POS0}, s[16:19], s{S_T1} offen'])
        return G
    SQ = math.sqrt(10.0 * math.log2(math.e))
    def pstage(i):
        d = DR + i; t = Y; pk = MP
        G = [[f'    v_lshlrev_b32 v{d}, 16, v{d}', f'    v_mul_f32 v{d}, 0x{f2u(SQ):08x}, v{d}']]
        g = G[0]
        for r in range(8): g.append(f'    v_add_f32 v{t+r}, 0x{f2u(-bf16r(r/7.0)*SQ):08x}, v{d}' if r else f'    v_mov_b32 v{t}, v{d}')
        for r in range(8): g.append(f'    v_mul_f32 v{t+r}, v{t+r}, v{t+r}')
        for r in range(8): g.append(f'    v_exp_f32_e64 v{t+r}, -v{t+r}')
        for rp in range(4): g.append(f'    v_cvt_pk_bf16_f32 v{pk+rp}, v{t+2*rp}, v{t+2*rp+1}')
        for rp in range(4):
            for o in range(12):
                x = PR + 12 * i + o
                g.append(f'    v_dot2_f32_bf16 v{x}, v{pk+rp}, s{wreg(o,rp)}, ' + ('0' if rp == 0 else f'v{x}'))
        return g
    WD, WU = 52, 68
    def wunpack():
        L = []
        for z in range(8):
            L += [f'    s_lshl_b32 s{WD+2*z}, s{W_DN+z}, 16', f'    s_and_b32 s{WD+2*z+1}, s{W_DN+z}, 0xffff0000',
                  f'    s_lshl_b32 s{WU+2*z}, s{W_UP+z}, 16', f'    s_and_b32 s{WU+2*z+1}, s{W_UP+z}, 0xffff0000']
        return L
    AR, BR, WR, KC, NB, SUM, EA = 8, 16, 24, 44, 52, 40, 41
    def dec_consts():
        return [f'    s_lshr_b32 s{S_T0}, s{S_MG}, 23', f'    s_lshr_b32 s{S_T1}, s{S_MG+1}, 23',
                f'    s_sub_u32 s{S_T2}, s{S_T0}, 23', f'    s_lshl_b32 s{S_T2}, s{S_T2}, 23',
                f'    v_mov_b32 v{KC}, s{S_T2}',
                f'    v_mul_f32 v{KC}, 0x{f2u(1.0/32767):08x}, v{KC}',
                f'    v_mul_f32 v{KC+1}, 0x{f2u(32768.0/32767):08x}, v{KC}',
                f'    s_lshl_b32 s{S_T0}, s{S_T0}, 2', f'    s_lshl_b32 s{S_T1}, s{S_T1}, 2',
                f'    s_add_u32 s{S_T0}, s{S_T0}, 16384', f'    s_add_u32 s{S_T1}, s{S_T1}, 16384',
                f'    v_cvt_f32_u32 v{NB}, s{S_T0}', f'    v_cvt_f32_u32 v{NB+1}, s{S_T1}',
                f'    v_mul_f32 v{KC+2}, 0x{f2u(-16384.0):08x}, v{KC}',
                f'    v_mul_f32_e64 v{KC+3}, -v{NB}, v{KC}',
                f'    v_mul_f32_e64 v{KC+4}, -v{NB}, v{KC+1}',
                f'    v_mul_f32_e64 v{KC+5}, -v{NB+1}, v{KC+1}',
                f'    v_mul_f32 v{KC+6}, 0x{f2u(-16384.0):08x}, v{KC+1}',
                f'    v_mov_b32 v{SUM}, 0',
                f'    v_mul_u32_u24 v{EA}, 6, v{T4}', f'    v_add_u32 v{EA}, {ACC+24}, v{EA}']
    def front_fast(i):
        w = WR; n = WR + 6; M21 = 0x1fffff
        L = []
        if i == 2: L.append(f'    v_add_u32 v{EA}, {2*24576}, v{EA}')
        o = 24576 * (i & 1)
        L += [f'    ds_read_b64 v[{w+4}:{w+5}], v{EA} offset:{o+16}', f'    ds_read_b64 v[{w}:{w+1}], v{EA} offset:{o}',
              f'    ds_read_b64 v[{w+2}:{w+3}], v{EA} offset:{o+8}',
              f'    v_and_b32 v{n}, 0x1ff, v{w+4}',
              f'    v_add_u32 v{SUM}, v{SUM}, v{n}',
              f'    v_cmp_lt_u32 vcc, {NMAX}, v{n}',
              f'    v_cvt_f32_u32 v{n}, v{n}',
              f'    v_lshrrev_b32 v{AR+3}, 9, v{w+4}', f'    v_and_b32 v{AR+7}, 0x7fffff, v{w+5}',
              f'    s_cbranch_vccz .Lnp{i}', f'    v_add_u32 v{SUM}, 0x100000, v{SUM}', f'.Lnp{i}:']
        for z in range(5): L.append(f'    v_mul_f32 v{NB+z}, v{n}, v{KC+2+z}')
        L += [f'    v_and_b32 v{AR}, {M21}, v{w}', f'    v_alignbit_b32 v{AR+1}, v{w+1}, v{w}, 21', f'    v_lshrrev_b32 v{AR+4}, 10, v{w+1}',
              f'    v_and_b32 v{AR+2}, {M21}, v{w+2}', f'    v_alignbit_b32 v{AR+5}, v{w+3}, v{w+2}, 21', f'    v_lshrrev_b32 v{AR+6}, 10, v{w+3}',
              f'    v_and_b32 v{AR+1}, {M21}, v{AR+1}', f'    v_and_b32 v{AR+5}, {M21}, v{AR+5}']
        for z in range(8): L.append(f'    v_cvt_f32_u32 v{AR+z}, v{AR+z}')
        comb = [0, 1, 0, 0, 2, 2, 3, 4]
        for z in range(8): L.append(f'    v_fma_f32 v{AR+z}, v{AR+z}, v{KC+(z>>2)}, v{NB+comb[z]}')
        return L
    def front_slow(i):
        L = []
        if i == 2: L.append(f'    v_add_u32 v{EA}, 65536, v{EA}')
        o = 32768 * (i & 1)
        return L + [f'    ds_read_b128 v[{AR}:{AR+3}], v{EA} offset:{o}', f'    ds_read_b128 v[{AR+4}:{AR+7}], v{EA} offset:{o+16}']
    def bsel(k): return ('op_sel:[1,0,0]' if k & 1 else 'op_sel_hi:[0,1,1]')
    def back(i):
        L = []; p = PR + 12 * i; ag = WR; up = WR + 4; m = MR + 2 * i
        for k in range(4):
            for l in range(2):
                for dp in range(2):
                    b = BR + 4 * l + 2 * dp; a = AR + 4 * l + (k & 2); w = WD + 4 * k + 2 * dp
                    if k == 0: L.append(f'    v_pk_mul_f32 v[{b}:{b+1}], v[{a}:{a+1}], s[{w}:{w+1}] op_sel_hi:[0,1]')
                    else: L.append(f'    v_pk_fma_f32 v[{b}:{b+1}], v[{a}:{a+1}], s[{w}:{w+1}], v[{b}:{b+1}] {bsel(k)}')
        for d in range(4): L.append(f'    v_mul_f32 v{ag+d}, v{p+d}, v{BR+d}')
        for d in range(4): L.append(f'    v_fmac_f32 v{ag+d}, v{p+4+d}, v{BR+4+d}')
        L += [f'    v_lshlrev_b32 v{AR}, 16, v{m}', f'    v_and_b32 v{AR+1}, v{MHI}, v{m}',
              f'    v_lshlrev_b32 v{AR+2}, 16, v{m+1}', f'    v_and_b32 v{AR+3}, v{MHI}, v{m+1}']
        for k in range(4):
            for dp in range(2):
                b = up + 2 * dp; a = ag + (k & 2); w = WU + 4 * k + 2 * dp
                if k == 0: L.append(f'    v_pk_mul_f32 v[{b}:{b+1}], v[{a}:{a+1}], s[{w}:{w+1}] op_sel_hi:[0,1]')
                else: L.append(f'    v_pk_fma_f32 v[{b}:{b+1}], v[{a}:{a+1}], s[{w}:{w+1}], v[{b}:{b+1}] {bsel(k)}')
        for d in range(4): L.append(f'    v_fmac_f32 v{AR+d}, v{up+d}, v{p+8+d}')
        L += [f'    v_cvt_pk_bf16_f32 v{m}, v{AR}, v{AR+1}', f'    v_cvt_pk_bf16_f32 v{m+1}, v{AR+2}, v{AR+3}',
              f'    v_lshlrev_b32 v{BR}, 1, v{T4}', f'    s_movk_i32 s{S_T0}, {8192*i}',
              f'    buffer_store_dwordx2 v[{m}:{m+1}], v{BR}, s[20:23], s{S_T0} offen {OST}']
        return L
    def tail(front, tag):
        L = []
        for i in range(3): L += front(i) + back(i)
        L += [f'    s_cmp_lg_u32 s{S_WAVE}, 0', f'    s_cbranch_scc1 .Lt3{tag}', '    s_bfm_b64 exec, 53, 0']
        L += front(3) + back(3) + [FULL, '    s_waitcnt lgkmcnt(0)', f'.Lt3{tag}:']
        return L
    def pall(tag):
        L = []
        for i in range(3): L += pstage(i)
        L += [f'    s_waitcnt vmcnt(0)', f'    s_cmp_lg_u32 s{S_WAVE}, 0', f'    s_cbranch_scc1 .Lp3{tag}'] + pstage(3) + [f'.Lp3{tag}:']
        return L

    L = [name + ':', '    s_cmp_ge_u32 s2, 256', '    s_cbranch_scc1 .Lk2_end',
         '    s_load_dwordx2 s[26:27], s[0:1], 104', '    s_load_dwordx2 s[28:29], s[0:1], 0',
         '    s_load_dwordx2 s[30:31], s[0:1], 24', '    s_load_dwordx2 s[32:33], s[0:1], 88',
         '    s_load_dwordx8 s[4:11], s[0:1], 56']
    if prof: L += ['    s_memtime s[34:35]', f'    v_writelane_b32 v{PV}, s34, 30']
    L += stamp()
    E0, MX, CB, T16, U, S, SI = 8, 12, 16, 17, 18, 19, 20
    L += [f'    v_lshrrev_b32 v{E0}, 6, v0', f'    v_lshlrev_b32 v{T16}, 4, v0', f'    v_and_b32 v{CB}, 0x1ff, v0',
          f'    v_readfirstlane_b32 s{S_WAVE}, v{E0}',
          f'    v_lshlrev_b32 v{E0}, 12, v{CB}',
          f'    s_and_b32 s{S_BK}, s2, 7', f'    s_lshl_b32 s{S_BK}, s{S_BK}, 5', f'    s_lshr_b32 s{S_T0}, s2, 3', f'    s_add_u32 s{S_BK}, s{S_BK}, s{S_T0}',
          f'    s_lshl_b32 s{S_T0}, s{S_BK}, 4', f'    s_and_b32 s{S_T1}, s{S_WAVE}, 8', f'    s_add_u32 s{S_T0}, s{S_T0}, s{S_T1}',
          '    s_waitcnt lgkmcnt(0)']
    L += srd(12, 26, None, 500 * 4096, WSB + META)
    L += [f'    buffer_load_dwordx2 v[{E0}:{E0+1}], v{E0}, s[12:15], s{S_T0} offen']
    if P.get('pf'): L += pf_info()
    L += srd(16, 26, None, 16000, WSB + META + MAXO)
    L += [f'    buffer_load_dwordx4 v[{MX}:{MX+3}], v{T16}, s[16:19], 0 offen']
    L += wloads2()
    L += srd(4, 26, None, 500 * CHB, WSB)
    L += ['    s_mov_b32 s8, s28', '    s_or_b32 s9, s29, 0x80000', '    s_mov_b32 s10, 800000', '    s_mov_b32 s11, 0x00020000']
    L += [f'    s_mul_i32 s{S_T0}, s{S_BK}, 25000', f'    s_mul_i32 s{S_T1}, s{S_BK}, 6250']
    L += srd(12, 28, S_T0, 25000) + srd(20, 32, S_T0, 25000) + srd(16, 30, S_T1, 6250)
    F = 24
    L += [f'    v_lshlrev_b32 v{T4}, 2, v0', f'    v_lshlrev_b32 v{KB}, 3, v0', f'    v_lshlrev_b32 v{POS0}, 1, v0',
          f'    v_mov_b32 v{F}, 0', f'    v_mov_b32 v{F+1}, 0',
          f'    ds_write_b64 v{KB}, v[{F}:{F+1}]',
          f'    v_bfrev_b32 v{F+4}, 1', f'    v_bfrev_b32 v{F+5}, 1', f'    v_bfrev_b32 v{F+6}, 1', f'    v_bfrev_b32 v{F+7}, 1',
          f'    v_add_u32 v{T16}, {LISTB}, v{T16}']
    for z in range(4): L.append(f'    ds_write_b128 v{T16}, v[{F+4}:{F+7}] offset:{16384*z}')
    if LAY == 1: L += [f'    v_mov_b32 v{KB}, v{T4}']
    if LAY == 2: L += [f'    s_lshl_b32 s{S_T0}, s{S_WAVE}, 7', f'    v_add_u32 v{PQ}, s{S_T0}, v{POS0}', f'    v_lshlrev_b32 v{KB}, 1, v{PQ}']
    L += [f'    v_add_u32 v{KB}, {KEYS}, v{KB}', f'    v_mov_b32 v{FOUR}, 4', f'    v_mov_b32 v{MHI}, 0xffff0000',
          f'    v_mov_b32 v{NH}, 0x{f2u(-32767.0*32767.0/2):08x}',
          f'    s_mov_b32 s{S_T0}, {CHB}', f'    v_mul_u32_u24 v{CB}, s{S_T0}, v{CB}',
          f'    s_mov_b32 s{S_P21}, 0x200000', f'    s_mov_b32 s{S_ACC}, {ACC}']
    if P.get('pf'): L += pf_addr() + pf_m(0)
    L += bar(False)
    N0, N1, B0, B1 = 28, 29, 30, 31
    L += [f'    v_lshrrev_b32 v{N0}, 16, v{E0}', f'    v_lshrrev_b32 v{N1}, 16, v{E0+1}',
          f'    v_and_b32 v{E0}, 0xffff, v{E0}', f'    v_and_b32 v{E0+1}, 0xffff, v{E0+1}',
          f'    v_sub_u32 v{N0}, v{N0}, v{E0}', f'    v_sub_u32 v{N1}, v{N1}, v{E0+1}',
          f'    v_mad_u32_u24 v{B0}, v{E0}, 12, v{CB}', f'    v_mad_u32_u24 v{B1}, v{E0+1}, 12, v{CB}',
          f'    v_max_u32 v{E0}, v{N0}, v{N1}', f'    v_cmp_lt_u32 vcc, 64, v{E0}',
          f'    v_min_u32 v{N0}, 64, v{N0}', f'    v_min_u32 v{N1}, 64, v{N1}',
          f'    v_lshl_or_b32 v{SI+1}, v{N1}, 16, v{N0}',
          f'    v_add_u32 v{S}, 0x10001, v{SI+1}', f'    v_lshrrev_b32 v{S}, 1, v{S}', f'    v_and_b32 v{S}, 0x7fff7fff, v{S}',
          f'    v_mov_b32 v{SI}, v{S}',
          f'    v_max3_u32 v{MX}, v{MX}, v{MX+1}, v{MX+2}', f'    v_max_u32 v{MX}, v{MX}, v{MX+3}',
          f'    v_cndmask_b32 v{SI+2}, v{MX}, v{MHI}, vcc']
    for z in zip(dpp_scan('v_add_u32', SI), dpp_scan('v_add_u32', SI + 1), dpp_scan('v_max_u32', SI + 2)): L += list(z)
    L += [f'    s_lshl_b32 s{S_T0}, s{S_WAVE}, 4', f'    v_mov_b32 v{E0}, s{S_T0}',
          '    s_mov_b32 exec_lo, 0', '    s_brev_b32 exec_hi, 1',
          f'    ds_write_b96 v{E0}, v[{SI}:{SI+2}] offset:{SCR}', FULL,
          f'    v_and_b32 v{E0}, 60, v{T4}', f'    v_lshlrev_b32 v{E0}, 2, v{E0}',
          f'    v_sub_u32 v{S}, v{SI}, v{S}']
    L += bar()
    R = 12
    L += [f'    ds_read_b96 v[{R}:{R+2}], v{E0} offset:{SCR}', f'    v_mov_b32 v{R+3}, v{R}']
    for z in zip(dpp_scan('v_add_u32', R, False), dpp_scan('v_add_u32', R + 1, False), dpp_scan('v_max_u32', R + 2, False)): L += list(z)
    L += [f'    v_sub_u32 v{R+3}, v{R}, v{R+3}',
          f'    v_readlane_b32 s26, v{R}, 7', f'    v_readlane_b32 s27, v{R}, 15',
          f'    v_readlane_b32 s28, v{R+1}, 7', f'    v_readlane_b32 s29, v{R+1}, 15',
          f'    v_readlane_b32 s{S_MG}, v{R+2}, 15', f'    v_readlane_b32 s{S_T2}, v{R+3}, s{S_WAVE}',
          '    s_sub_u32 s27, s27, s26', '    s_sub_u32 s29, s29, s28',
          f'    s_cmp_ge_u32 s{S_WAVE}, 8', f'    s_cselect_b32 s{S_T0}, s26, 0', f'    s_cselect_b32 s{S_T1}, {2*LQ}, 0', f'    s_add_u32 s{S_T1}, s{S_T1}, {LISTB}',
          f'    s_sub_u32 s{S_T2}, s{S_T2}, s{S_T0}',
          f'    v_add_u32 v{S}, s{S_T2}, v{S}']
    for r, cap in ((26, 3584), (27, 3584), (28, STG // 2), (29, STG // 2)):
        L += [f'    s_and_b32 s{S_T0}, s{r}, 0xffff', f'    s_lshr_b32 s{r}, s{r}, 16', f'    s_max_u32 s{r}, s{r}, s{S_T0}',
              f'    s_cmp_gt_u32 s{r}, {cap}', '    s_cbranch_scc1 .Lslow']
    L += [f'    s_lshr_b32 s{S_MG}, s{S_MG}, 7', f'    s_cmp_gt_u32 s{S_MG}, 215', '    s_cbranch_scc1 .Lslow',
          f'    s_lshl_b32 s{S_MG}, s{S_MG}, 23',
          f'    s_add_u32 s{S_MG+1}, s{S_MG}, {(39<<23)+0x4000}', f'    s_add_u32 s{S_MG}, s{S_MG}, {(25<<23)+0x4000}']
    A0, A1, RM = 8, 9, 10
    L += [f'    v_and_b32 v{A0}, 0xffff, v{S}', f'    v_lshrrev_b32 v{A1}, 16, v{S}',
          f'    v_lshl_add_u32 v{A0}, v{A0}, 2, s{S_T1}', f'    v_lshl_add_u32 v{A1}, v{A1}, 2, s{S_T1}']
    for z, (a, b, n) in enumerate(((A0, B0, N0), (A1, B1, N1))):
        o = LQ * z
        L += [f'    v_mov_b32 v{RM}, v{n}', f'    v_cmpx_lt_i32 vcc, 0, v{RM}', f'.Lll{z}:',
              f'    ds_write_b32 v{a}, v{b} offset:{o}', f'    v_add_u32 v{RM}, -2, v{RM}',
              f'    v_add_u32 v{a}, 4, v{a}', f'    v_add_u32 v{b}, 24, v{b}',
              f'    v_cmpx_lt_i32 vcc, 0, v{RM}', f'    s_cbranch_execnz .Lll{z}', FULL,
              f'    v_add_u32 v{a}, -4, v{a}', f'    v_add_u32 v{b}, {(1<<30)-24}, v{b}',
              f'    v_cmpx_ne_u32 vcc, 0, v{RM}', f'    ds_write_b32 v{a}, v{b} offset:{o}', FULL]
    LA_, LC = 11, 12
    L += [f'    v_and_b32 v{LA_}, -4, v{POS0}', f'    v_add_u32 v{LA_}, {LISTB}, v{LA_}',
          f'    v_bfe_u32 v{LC}, v{POS0}, 1, 1', f'    s_mov_b32 s{S_T0}, {(1<<30)+12}', f'    v_mul_lo_u32 v{LC}, v{LC}, s{S_T0}',
          f'    v_mov_b32 v{LC+1}, 0xbfffffff']
    L += repack()
    L += bar()
    def lread(q): return [f'    ds_read_b32 v{areg(q,j)}, v{LA_} offset:{LQ*q+2048*j}' for j in range(7)]
    def lfix(q, j): return [f'    v_add_u32 v{areg(q,j)}, v{LC}, v{areg(q,j)}', f'    v_and_b32 v{areg(q,j)}, v{LC+1}, v{areg(q,j)}']
    L += lread(0) + lread(1)
    for j in range(7): L += lfix(0, j) + rec_load(0, j)
    L += pf_rec(1)
    L += lread(2) + lread(3)
    for q in (1, 2, 3):
        for j in range(7): L += lfix(q, j)
    L1 = [rec_load(1, j) for j in range(7)]; L2 = [rec_load(2, j) for j in range(7)]; L3 = [rec_load(3, j) for j in range(7)]
    a1, a2, a3 = P.get('k2_l1', (2, 1, 4))
    H0 = [hist(0, j) for j in range(7)]
    L += flat(H0[:7 - a1])
    for z in range(a1): L += L1[z] + H0[7 - a1 + z]
    L += bar()
    L += wscan(0)
    L += [f'    v_mov_b32 v{Y+z}, 0' for z in range(4)] + [f'    v_lshl_add_u32 v{AD}, v{POS0}, 3, s{S_ACC}']
    for z in range(4): L.append(f'    ds_write_b128 v{AD}, v[{Y}:{Y+3}] offset:{16384*z}')
    L += [f'    v_add_u32 v{AD}, 65536, v{AD}', f'    v_cmpx_gt_u32 vcc, {(75024-65536)//8}, v{POS0}',
          f'    ds_write_b128 v{AD}, v[{Y}:{Y+3}]', FULL,
          f'    ds_write_b32 v{Y}, v{Y} offset:{SCR}']
    L += flat(L1[a1:a1 + a2])
    L += bar()
    L += flat(interleave(place(0), L1[a1 + a2:]))
    L += bar()
    sched = P.get('sched') or SCHED[P.get('sv', 0)]
    PL = {q: place(q) for q in (1, 2, 3)}
    TL = tail_loads()
    seen = set()
    L += [';@R0']
    for tok in sched.split():
        if tok[0] == 'S': L += [f'    s_setprio {tok[1]}']; continue
        if tok == 'B': L += ['    s_barrier']; continue
        assert tok in '|T' or tok not in seen, tok
        seen.add(tok)
        c = tok[0]
        if c == '|': L += bar(); continue
        if c == 'T': L += stamp(); continue
        q = int(tok[1]); j = int(tok[2]) if len(tok) > 2 else None
        if c == 'g': L += gather(q, j)
        elif c == 'a': assert f'g{q}{j}' in seen; L += acc(q, j)
        elif c == 'r': L += flat(readback(q))
        elif c == 'h': L += hist(q, j)
        elif c == 's': L += wscan(q)
        elif c == 'p': L += PL[q][j]
        elif c == 'l':
            if q == 3: assert f'a0{j}' in seen
            L += rec_load(q, j)
        elif c == 't': assert 'a26' in seen and 'p38' in seen; L += TL[q]
        elif c == 'e':
            e = [X[1] + 3 + 4 * (3 * q + z) for z in range(3)]
            L += [f'    v_lshlrev_b32 v{e[1]}, 1, v{T4}', f'    s_movk_i32 s{S_T0}, {8192*q}', f'    s_movk_i32 s{S_T1}, {2048*q}',
                  f'    buffer_load_dword v{e[0]}, v{e[1]}, s[12:15], s{S_T0} offen',
                  f'    buffer_load_dword v{e[1]}, v{e[1]}, s[12:15], s{S_T0} offen offset:4',
                  f'    buffer_load_ushort v{e[2]}, v{POS0}, s[16:19], s{S_T1} offen']
        elif c == 'M':
            assert 'a26' in seen and 'p38' in seen and all(f'e{z}' in seen for z in range(4))
            for i in range(4):
                e = [X[1] + 3 + 4 * (3 * i + z) for z in range(3)]
                L += [f'    v_mov_b32 v{MR+2*i}, v{e[0]}', f'    v_mov_b32 v{MR+2*i+1}, v{e[1]}', f'    v_mov_b32 v{DR+i}, v{e[2]}']
                seen.add(f't{i}')
        elif c == 'P':
            assert f't{q}' in seen
            g = pstage(q)
            if q == 3: g = g[:2] + [f'    s_cmp_lg_u32 s{S_WAVE}, 0', f'    s_cbranch_scc1 .Lp3f{VAR}'] + g[2:] + [f'.Lp3f{VAR}:']
            L += g
        elif c == 'f': L += pf_rec(q)
        elif c == 'm': L += pf_m(q)
        else: assert 0, tok
    need = [f'{c}{q}{j}' for c in 'ga' for q in range(4) for j in range(7)] + [f'h{q}{j}' for q in (1, 2, 3) for j in range(7)] + \
           [f'p{q}{j}' for q in (1, 2, 3) for j in range(9)] + [f'l{q}{j}' for q in (2, 3) for j in range(7)] + \
           [f'{c}{q}' for c in 'rtP' for q in range(4)] + ['s1', 's2', 's3']
    assert all(n in seen for n in need), [n for n in need if n not in seen]
    L += ['    s_waitcnt vmcnt(0)', '    s_nop 4', ';@R1']
    L += wunpack() + dec_consts()
    L += bar()
    L += tail(front_fast, 'f')
    L += dpp_scan('v_add_u32', SUM)
    L += ['    s_mov_b32 exec_lo, 0', '    s_brev_b32 exec_hi, 1', f'    ds_add_u32 v{FOUR}, v{SUM} offset:{SCR-4}', FULL]
    L += [f'    s_add_u32 s26, s26, s27', '    s_add_u32 s28, s28, s29', '    s_add_u32 s26, s26, s28']
    if LAY: L += ['    s_lshr_b32 s26, s26, 1']
    L += bar()
    L += [f'    ds_read_b32 v{SUM}, v{FOUR} offset:{SCR-4}', f'    v_readfirstlane_b32 s27, v{SUM}',
          '    s_cmp_lg_u32 s26, s27', '    s_cbranch_scc1 .Lslow']
    if prof:
        L += ['    s_waitcnt vmcnt(0)'] + stamp() + ['    s_waitcnt lgkmcnt(0)'] + stamp()
        L += ['    s_waitcnt lgkmcnt(0)', '    s_memtime s[34:35]', f'    v_writelane_b32 v{PV}, s34, 31']
        L += [f'    s_cmp_lg_u32 s{S_WAVE}, 0', '    s_cbranch_scc1 .Lk2_end', '    s_load_dwordx2 s[26:27], s[0:1], 104', '    s_waitcnt lgkmcnt(0)']
        L += srd(8, 26, None, 65536, WSB + PROF + 0x10000)
        L += ['    s_lshl_b32 s12, s2, 7', '    s_bfm_b64 exec, 32, 0', f'    buffer_store_dword v{PV}, v{T4}, s[8:11], s12 offen']
    L += ['.Lk2_end:', '    s_endpgm']
    L += ['.Lslow:', '    s_waitcnt vmcnt(0) lgkmcnt(0)', '    s_barrier']
    if P.get('dbgslow'):
        L += ['    s_load_dwordx2 s[26:27], s[0:1], 96', '    s_waitcnt lgkmcnt(0)', '    v_mov_b32 v8, 0', '    v_mov_b32 v9, 1',
              '    s_mov_b64 exec, 1', '    global_atomic_add v8, v9, s[26:27]', FULL]
    L += [f'    v_mov_b32 v{Y+z}, 0' for z in range(4)] + [f'    v_lshlrev_b32 v{AD}, 2, v{T4}']
    for z in range(4): L.append(f'    ds_write_b128 v{AD}, v[{Y}:{Y+3}] offset:{16384*z}')
    L.append(f'    v_add_u32 v{AD}, 65536, v{AD}')
    for z in range(3): L.append(f'    ds_write_b128 v{AD}, v[{Y}:{Y+3}] offset:{16384*z}')
    L += ['    s_load_dwordx4 s[28:31], s[0:1], 56', '    s_load_dwordx2 s[26:27], s[0:1], 72', '    s_load_dwordx2 s[32:33], s[0:1], 80',
          '    s_waitcnt lgkmcnt(0)',
          f'    s_load_dwordx16 s[{W_RBF}:{W_RBF+15}], s[28:29], 0',
          f'    s_load_dwordx16 s[{W_SBF}:{W_SBF+15}], s[30:31], 0',
          f'    s_load_dwordx16 s[{W_SBF+16}:{W_SBF+31}], s[30:31], 64',
          f'    s_load_dwordx8 s[{W_DN}:{W_DN+7}], s[26:27], 0',
          f'    s_load_dwordx8 s[{W_UP}:{W_UP+7}], s[32:33], 0',
          '    s_waitcnt lgkmcnt(0)',
          '    s_load_dwordx2 s[26:27], s[0:1], 104']
    L += repack()
    L += flat(tail_loads()) + pall('s') + wunpack()
    L += ['    s_waitcnt vmcnt(0) lgkmcnt(0)', '    s_barrier']
    LN, UO, T3, G2 = 24, 25, 28, 32
    L += [f'    s_lshl_b32 s{S_T0}, s{S_BK}, 4', f'    s_add_u32 s{S_T0}, s{S_T0}, {WSB+META}',
          f'    s_add_u32 s26, s26, s{S_T0}', '    s_addc_u32 s27, s27, 0',
          f'    s_mov_b32 s40, s{S_WAVE}', f'    v_bfe_u32 v{LN}, v{T4}, 2, 6',
          '.Lsl_c:', '    s_lshl_b32 s42, s40, 12', '    s_load_dwordx4 s[36:39], s[26:27], s42',
          f'    s_mul_i32 s44, s40, {CHB}', '    s_mov_b32 s41, 0', '    s_waitcnt lgkmcnt(0)',
          '.Lsl_q:', '    s_and_b32 s42, s36, 0xffff', '    s_lshr_b32 s43, s36, 16',
          '.Lsl_u:', '    s_cmp_ge_u32 s42, s43', '    s_cbranch_scc1 .Lsl_nq',
          f'    v_add_u32 v{UO}, s42, v{LN}', f'    v_cmpx_gt_u32 vcc, s43, v{UO}',
          f'    v_mul_u32_u24 v{UO}, 12, v{UO}',
          f'    buffer_load_dwordx3 v[{T3}:{T3+2}], v{UO}, s[4:7], s44 offen']
    for h in range(2):
        k = T3 + h
        L += [f'    v_lshrrev_b32 v{G2}, 12, v{k}', f'    v_cmpx_ne_u32 vcc, 0, v{k}',
              f'    buffer_load_dwordx2 v[{G2}:{G2+1}], v{G2}, s[8:11], 0 idxen',
              f'    v_cvt_f32_i32_sdwa v{CP}, sext(v{T3+2}) dst_sel:DWORD dst_unused:UNUSED_PAD src0_sel:WORD_{h}',
              f'    v_mul_f32 v{CP}, 0x{f2u(1.0/32767):08x}, v{CP}',
              f'    v_add_f32 v{CP+1}, v{CP}, v{CP}', f'    v_fma_f32 v{CP+1}, v{CP+1}, v{CP}, -1.0',
              f'    v_and_b32 v{AD}, 0xfff, v{k}', f'    v_lshlrev_b32 v{AD}, 5, v{AD}',
              f'    v_lshlrev_b32 v{MP}, 16, v{G2}', f'    v_and_b32 v{MP+1}, v{MHI}, v{G2}',
              f'    v_lshlrev_b32 v{MP+2}, 16, v{G2+1}', f'    v_and_b32 v{MP+3}, v{MHI}, v{G2+1}']
        for z in range(8):
            L += [f'    v_mul_f32 v{Y+z}, v{CP+(z>>2)}, v{MP+(z&3)}', f'    ds_add_f32 v{AD}, v{Y+z} offset:{4*z}']
    L += [FULL, '    s_waitcnt vmcnt(0) lgkmcnt(0)', '    s_add_u32 s42, s42, 64', '    s_branch .Lsl_u',
          '.Lsl_nq:', '    s_mov_b32 s36, s37', '    s_mov_b32 s37, s38', '    s_mov_b32 s38, s39',
          '    s_add_u32 s41, s41, 1', '    s_cmp_lt_u32 s41, 4', '    s_cbranch_scc1 .Lsl_q',
          '    s_add_u32 s40, s40, 16', '    s_cmp_lt_u32 s40, 500', '    s_cbranch_scc1 .Lsl_c',
          f'    v_lshlrev_b32 v{EA}, 3, v{T4}', f'    v_add_u32 v{EA}, 32, v{EA}',
          '    s_waitcnt vmcnt(0) lgkmcnt(0)', '    s_barrier']
    L += tail(front_slow, 's')
    L += ['    s_endpgm']
    x = P.get('dbgx', 0)
    if x & 1: L = [l for l in L if not ('idxen' in l and 'dwordx2' in l)]
    if x & 2: L = [l for l in L if 'ds_add_u64' not in l]
    if x & 4: L = [l for l in L if not any(o in l for o in ('v_pk_fma_f32 v[14', 'v_pk_fma_f32 v[16', 'v_pk_fma_f32 v[18', 'v_pk_fma_f32 v[20', 'v_mad_u64', 'v_lshl_or_b32 v20', 'v_lshlrev_b32 v15', 'v_lshlrev_b32 v19', 'v_cvt_f32_i32_sdwa', 'v_fma_f32 v9'))]
    if x: L = [l.replace('s_cmp_lg_u32 s26, s27', 's_cmp_lg_u32 s26, s26') for l in L]
    return process(L)
```

```python
from asmlib import *

NWG1 = 250
CH = 25600
CHB = 159744
META = 0x5000000
MAXO = 0x200000
PROF = 0x6000000
MAG_OUT = 1374390
MAG_Q = 21474

def dpp_scan(op, r, full=True):
    L = []
    for s in (1, 2, 4, 8):
        L.append(f'    {op}_dpp v{r}, v{r}, v{r} row_shr:{s} row_mask:0xf bank_mask:0xf')
    if full:
        L.append(f'    {op}_dpp v{r}, v{r}, v{r} row_bcast:15 row_mask:0xa bank_mask:0xf')
        L.append(f'    {op}_dpp v{r}, v{r}, v{r} row_bcast:31 row_mask:0xc bank_mask:0xf')
    return L

def srd(d, plo, addreg, nrec, extra=0):
    L = []
    if addreg is None:
        L.append(f'    s_add_u32 s{d}, s{plo}, {extra}')
        L.append(f'    s_addc_u32 s{d+1}, s{plo+1}, 0')
    else:
        L.append(f'    s_add_u32 s{d}, s{plo}, s{addreg}')
        L.append(f'    s_addc_u32 s{d+1}, s{plo+1}, 0')
        if extra:
            L.append(f'    s_add_u32 s{d}, s{d}, {extra}')
            L.append(f'    s_addc_u32 s{d+1}, s{d+1}, 0')
    L.append(f'    s_mov_b32 s{d+2}, {nrec}')
    L.append(f'    s_mov_b32 s{d+3}, 0x00020000')
    return L

def gen_k1(P):
    LD = P.get('k1_ld', 'nt'); ST = P.get('k1_st', 'sc1'); prof = P.get('prof', 0)
    WSB = P.get('wsb', 0); IL = P.get('k1_il', 1)
    CS, KEYS, SCR = 4096, 57344, 4096
    T16, T8, T4, FOUR, T12 = 1, 2, 3, 4, 5
    TMP = [6, 7, 8, 9, 10, 11, 127, 0]
    A, B, ANG = 12, 64, 114
    def rin(k, j): return (A if k == 0 else B) + (4 * j if j < 6 else 48)
    def rout(k, j): return (A if k == 0 else B) + (24 + 4 * j if j < 6 else 49)
    def rang(j): return ANG + 2 * j
    S_WAVE, S_WAVE4, S_MO, S_MQ, S_NEG, S_TOT, S_PRE, S_ROW = 46, 47, 48, 49, 50, 51, 52, 53
    sro = [0]
    def soff(val):
        r = 42 + sro[0] % 4; sro[0] += 1
        return r, f'    s_mov_b32 s{r}, {val}'
    pc = [0]
    def stamp():
        if not prof: return []
        r = 60 + 2 * pc[0]; pc[0] += 1
        return [f'    s_memrealtime s[{r}:{r+1}]']
    def bar(): return ['    s_waitcnt lgkmcnt(0)', '    s_barrier'] + stamp()

    def load_row(k, j):
        rec = k * CH + j * 4096
        g = []
        if IL:
            if j < 6: rec = (k * 6 + j) * NWG1 * 4096
            else:
                rec = 12 * NWG1 * 4096 + k * NWG1 * 1024
                r, _ = soff(0); t = f'    s_sub_u32 s{r}, {rec*4}, s59'
                g.append([t, f'    buffer_load_dword v{rin(k,j)}, v{T4}, s[8:11], s{r} offen {LD}'])
                g.append([t, f'    buffer_load_dword v{rout(k,j)}, v{T4}, s[12:15], s{r} offen {LD}'])
                r, _ = soff(0)
                g.append([f'    s_sub_u32 s{r}, {rec*4}, s59', f'    s_lshr_b32 s{r}, s{r}, 1', f'    v_lshrrev_b32 v{rang(j)}, 1, v{T4}',
                          f'    buffer_load_ushort v{rang(j)}, v{rang(j)}, s[16:19], s{r} offen {LD}'])
                return g
        r, t = soff(rec * 4)
        if j < 6:
            g.append([t, f'    buffer_load_dwordx4 v[{rin(k,j)}:{rin(k,j)+3}], v{T16}, s[8:11], s{r} offen {LD}'])
            g.append([t, f'    buffer_load_dwordx4 v[{rout(k,j)}:{rout(k,j)+3}], v{T16}, s[12:15], s{r} offen {LD}'])
            r, t = soff(rec * 2)
            g.append([t, f'    buffer_load_dwordx2 v[{rang(j)}:{rang(j)+1}], v{T8}, s[16:19], s{r} offen {LD}'])
        else:
            g.append([t, f'    buffer_load_dword v{rin(k,j)}, v{T4}, s[8:11], s{r} offen {LD}'])
            g.append([t, f'    buffer_load_dword v{rout(k,j)}, v{T4}, s[12:15], s{r} offen {LD}'])
            r, t = soff(rec * 2)
            g.append([t, f'    v_lshrrev_b32 v{rang(j)}, 1, v{T4}',
                      f'    buffer_load_ushort v{rang(j)}, v{rang(j)}, s[16:19], s{r} offen {LD}'])
        return g
    def recs(k):
        R = []
        for j in range(7):
            for i in range(4 if j < 6 else 1):
                R.append((j, rin(k, j) + i, rout(k, j) + i, rang(j) + i // 2, i & 1))
        return R
    def conv1(I_, O, a, hi, ta, tb):
        return [
            f'    v_mul_hi_u32_u24 v{ta}, s{S_MO}, v{O}',
            f'    v_mul_hi_u32_u24 v{tb}, s{S_MQ}, v{I_}',
            f'    v_mad_i32_i24 v{O}, v{ta}, s{S_NEG}, v{O}',
            f'    v_lshl_add_u32 v{ta}, v{tb}, 8, v{ta}',
            (f'    v_and_b32 v{tb}, 0xffff0000, v{a}' if hi else f'    v_lshlrev_b32 v{tb}, 16, v{a}'),
            f'    v_lshl_add_u32 v{I_}, v{I_}, 12, v{O}',
            f'    v_mul_f32 v{tb}, 0.15915494, v{tb}',
            f'    v_lshlrev_b32 v{O}, 2, v{ta}',
            f'    v_fract_f32 v{tb}, v{tb}',
            f'    ds_add_u32 v{O}, v{FOUR}',
            f'    v_cos_f32 v{tb}, v{tb}',
            f'    v_add_u32 v{I_}, 1, v{I_}',
            f'    v_cvt_pknorm_i16_f32 v{tb}, v{tb}, 0',
            f'    v_lshl_or_b32 v{O}, v{ta}, 18, v{tb}',
        ]
    def conv_row(k, j):
        R = [r for r in recs(k) if r[0] == j]
        g = []
        for p in range(0, len(R), 2):
            seqs = [conv1(r[1], r[2], r[3], r[4], TMP[2 * q], TMP[2 * q + 1]) for q, r in enumerate(R[p:p + 2])]
            for z in zip(*seqs): g.extend(z)
        return g
    def place(k, depth=5):
        R = recs(k); G = []
        n = len(R)
        for s in range(n + depth):
            g = []
            if s - depth >= 0:
                _, I_, O, _, _ = R[s - depth]; t = TMP[(s - depth) % (depth + 1)]
                g += [f'    ds_write_b32 v{t}, v{I_} offset:{KEYS}',
                      f'    v_lshrrev_b32 v{t}, 1, v{t}',
                      f'    ds_write_b16 v{t}, v{O} offset:{CS}']
            if s < n:
                _, I_, O, _, _ = R[s]; t = TMP[s % (depth + 1)]
                g += [f'    v_lshrrev_b32 v{t}, 16, v{O}',
                      f'    ds_add_rtn_u32 v{t}, v{t}, v{FOUR}']
            G.append(g)
        return G
    def scan(k, mid1=(), mid2=()):
        a, b, c, d, f = TMP[0:5]
        wsr = 20 if k == 0 else 32
        L = [f'    ds_read_b32 v{a}, v{T4}',
             f'    v_mov_b32 v{c}, s{S_WAVE4}',
             f'    v_add_u32 v{a}, 4, v{a}',
             f'    v_and_b32 v{a}, -8, v{a}',
             f'    v_mov_b32 v{b}, v{a}']
        L += dpp_scan('v_add_u32', b)
        L += ['    s_mov_b32 exec_lo, 0', '    s_brev_b32 exec_hi, 1',
              f'    ds_write_b32 v{c}, v{b} offset:{SCR}',
              '    s_mov_b64 exec, -1',
              f'    v_and_b32 v{c}, 63, v{T4}']
        L += flat(mid1)
        L += bar()
        L += [f'    ds_read_b32 v{d}, v{c} offset:{SCR}',
              f'    v_and_b32 v{c}, 0xfff, v{T16}',
              f'    v_mov_b32 v{f}, v{d}']
        L += dpp_scan('v_add_u32', f, full=False)
        L += [f'    v_sub_u32 v{d}, v{f}, v{d}',
              f'    v_readlane_b32 s{S_TOT}, v{f}, 15',
              f'    v_readlane_b32 s{S_PRE}, v{d}, s{S_WAVE}',
              f'    v_mov_b32 v{d}, 0',
              f'    v_add_u32 v{b}, s{S_PRE}, v{b}',
              f'    v_sub_u32 v{a}, v{b}, v{a}',
              f'    ds_write_b32 v{T4}, v{a}',
              f'    ds_write_b32 v{b}, v{d} offset:{KEYS-4}',
              f'    v_lshrrev_b32 v{a}, 3, v{a}',
              f'    v_lshl_or_b32 v{a}, v{b}, 13, v{a}',
              f'    s_lshr_b32 s{wsr+2}, s{S_TOT}, 1',
              f'    s_add_u32 s{wsr+2}, s{wsr+2}, s{S_TOT}',
              f'    buffer_store_dword v{a}, v{c}, s[28:31], s{S_ROW} offen',
              f'    s_add_u32 s{S_ROW}, s{S_ROW}, 4096']
        L += flat(mid2)
        L += bar()
        return L
    def rb_setup():
        return [f'    v_add_u32 v{TMP[6]}, {KEYS}, v{T8}', f'    v_add_u32 v{TMP[7]}, {KEYS+65536}, v{T8}']
    def readback(j, r):
        kb = TMP[6] if j < 8 else TMP[7]
        return [f'    ds_read_b64 v[{r}:{r+1}], v{kb} offset:{8192*(j%8)}',
                f'    ds_read_b32 v{r+2}, v{T4} offset:{CS+4096*j}']
    def store(k, j, r):
        s, t = soff(j * 12288)
        wsr = 20 if k == 0 else 32
        return [t, f'    buffer_store_dwordx3 v[{r}:{r+2}], v{T12}, s[{wsr}:{wsr+3}], s{s} offen {ST}']

    L = []
    L += ['bin_kernel:', f'    s_cmp_ge_u32 s2, {NWG1}', '    s_cbranch_scc1 .Lk1_end']
    L += ['    s_load_dwordx4 s[4:7], s[0:1], 0', '    s_load_dwordx2 s[36:37], s[0:1], 16',
          '    s_load_dwordx2 s[38:39], s[0:1], 32', '    s_load_dwordx2 s[40:41], s[0:1], 104']
    L += stamp()
    L += [f'    v_lshlrev_b32 v{T16}, 4, v0', f'    v_lshlrev_b32 v{T8}, 3, v0', f'    v_lshlrev_b32 v{T4}, 2, v0',
          f'    v_mul_u32_u24 v{T12}, 12, v0', f'    v_lshrrev_b32 v6, 6, v0', f'    v_mov_b32 v{FOUR}, 0',
          f'    v_readfirstlane_b32 s{S_WAVE}, v6',
          f'    s_mul_i32 s54, s2, {2*CH*4}', f'    s_mul_i32 s55, s2, {2*CH*2}', f'    s_mul_i32 s56, s2, 25600',
          f'    s_mul_i32 s57, s2, {2*CHB}',
          f'    s_mov_b32 s{S_MO}, {MAG_OUT}', f'    s_mov_b32 s{S_MQ}, {MAG_Q}', f'    s_mov_b32 s{S_NEG}, -3125',
          f'    s_lshl_b32 s{S_WAVE4}, s{S_WAVE}, 2',
          f'    s_lshl_b32 s{S_ROW}, s2, 13', f'    s_and_b32 s58, s{S_WAVE}, 12', f'    s_add_u32 s{S_ROW}, s{S_ROW}, s58',
          '    s_waitcnt lgkmcnt(0)']
    if IL:
        L += ['    s_lshl_b32 s54, s2, 14', '    s_lshl_b32 s55, s2, 13', '    s_mul_i32 s59, s2, 12288']
        L += srd(8, 6, 54, 0) + srd(12, 36, 54, 0) + srd(16, 38, 55, 0) + srd(24, 4, 56, 25600)
        L += ['    s_sub_u32 s10, 51200000, s54', '    s_sub_u32 s14, 51200000, s54', '    s_sub_u32 s18, 25600000, s55']
    else:
        L += srd(8, 6, 54, 2 * CH * 4) + srd(12, 36, 54, 2 * CH * 4) + srd(16, 38, 55, 2 * CH * 2) + srd(24, 4, 56, 25600)
    rows = [load_row(0, j) for j in range(7)] + [load_row(1, j) for j in range(7)]
    LA = P.get('k1_la', 2)
    L += flat(rows[0])
    L += [f'    ds_write_b32 v{T4}, v{FOUR}', f'    v_mov_b32 v{FOUR}, 4']
    L += [f'    buffer_load_dwordx4 v[{B}:{B+3}], v{T16}, s[24:27], 0 offen', '    s_movk_i32 s58, 0x4000',
          f'    buffer_load_dwordx4 v[{B+4}:{B+7}], v{T16}, s[24:27], s58 offen']
    L += srd(20, 40, 57, 0, WSB) + srd(32, 40, 57, 0, WSB + CHB) + srd(28, 40, None, MAXO + 32000, WSB + META)
    L += bar()
    for j in range(1, LA): L += flat(rows[j])
    nxt = LA
    def mred():
        R = []
        for i in range(8): R.append(f'    v_and_b32 v{B+i}, 0x7fff7fff, v{B+i}')
        for st in (4, 2, 1):
            for i in range(st): R.append(f'    v_pk_max_u16 v{B+i}, v{B+i}, v{B+i+st}')
        R += [f'    v_lshrrev_b32 v{B+1}, 16, v{B}', f'    v_and_b32 v{B}, 0xffff, v{B}', f'    v_max_u32 v{B}, v{B}, v{B+1}']
        R += dpp_scan('v_max_u32', B)
        R += [f'    s_lshl_b32 s58, s2, 6', f'    s_add_u32 s58, s58, {MAXO}', f'    v_mov_b32 v{B+1}, s{S_WAVE4}',
              '    s_mov_b32 exec_lo, 0', '    s_brev_b32 exec_hi, 1',
              f'    buffer_store_dword v{B}, v{B+1}, s[28:31], s58 offen', '    s_mov_b64 exec, -1']
        return R
    for j in range(7):
        L += flat(rows[nxt]); nxt += 1
        L += conv_row(0, j)
        if j == 0: L += mred()
    L += bar()
    rem = [g for r in rows[nxt:] for g in r]
    n1, n2, n3, n4 = P.get('k1_split', (1, 1, 7, 3))
    L += scan(0, rem[:n1], rem[n1:n1 + n2]); rem = rem[n1 + n2:]
    L += flat(interleave(place(0), rem[:n3]) if n3 else place(0)); rem = rem[n3:]
    L += rb_setup()
    L += bar()
    rb = [readback(j, A + 4 * j) for j in range(13)]
    L += [f'    v_mov_b32 v{TMP[0]}, 0', f'    ds_write_b32 v{T4}, v{TMP[0]}']
    L += flat(interleave(rb, rem[:n4]) if n4 and rem[:n4] else rb); rem = rem[n4:]
    L += bar()
    L += flat(rem)
    W0 = [store(0, j, A + 4 * j) for j in range(13)]
    w1, w2, w3 = P.get('k1_wsplit', (2, 1, 1))
    cv = [conv_row(1, j) for j in range(7)]
    L += flat(cv[:7 - w1])
    for z in range(w1): L += cv[7 - w1 + z] + W0[z]
    W0 = W0[w1:]
    L += bar()
    L += scan(1, W0[:w2], W0[w2:w2 + w3]); W0 = W0[w2 + w3:]
    L += flat(interleave(place(1), W0))
    L += rb_setup()
    L += bar()
    dst = [B + 4 * j for j in range(12)] + [A]
    for j in range(13): L += readback(j, dst[j])
    for j in range(13): L += store(1, j, dst[j])
    if prof:
        L += ['    s_waitcnt vmcnt(0)'] + stamp()
        if P.get('hprof') == 9:
            L += ['    s_load_dwordx2 s[4:5], s[0:1], 96', '    s_waitcnt lgkmcnt(0)', '    s_add_u32 s4, s4, 512', '    s_addc_u32 s5, s5, 0', f'    s_cmp_lg_u32 s{S_WAVE}, 0', '    s_cbranch_scc1 .Lk1_end',
                  '    s_mov_b64 exec, 1', '    v_mov_b32 v1, 0', '    s_not_b32 s6, s60', '    v_mov_b32 v2, s6', '    global_atomic_umax v1, v2, s[4:5]']
            for z, i in enumerate((2, 7, 11)):
                L += [f'    v_mov_b32 v2, s{60+2*i}', f'    global_atomic_umax v1, v2, s[4:5] offset:{4+8*z}',
                      f'    s_sub_u32 s6, s{60+2*i}, s60', '    v_mov_b32 v2, s6', f'    global_atomic_add v1, v2, s[4:5] offset:{8+8*z}']
        else: L += prof_dump(pc[0], 40, PROF + WSB, S_WAVE, '.Lk1_pd')
    L += ['.Lk1_end:', '    s_endpgm']
    return process(L)

def prof_dump(n, wsp, off, S_WAVE, lab, base=60):
    L = ['    s_waitcnt lgkmcnt(0)', f'    s_cmp_lg_u32 s{S_WAVE}, 0', f'    s_cbranch_scc1 {lab}']
    L += srd(8, wsp, None, 65536, off)
    L += ['    s_lshl_b32 s12, s2, 7', '    s_mov_b64 exec, 1', '    v_mov_b32 v1, 0']
    for i in range(n):
        L += [f'    v_mov_b32 v2, s{base+2*i}', f'    buffer_store_dword v2, v1, s[8:11], s12 offen offset:{4*i}']
    L += [f'{lab}:']
    return L
```

```python
from asmlib import *
from k1 import dpp_scan, srd, CHB, META, MAXO, PROF, MAG_Q
import struct, math

def f2u(x): return struct.unpack('<I', struct.pack('<f', x))[0]
def bf16r(x):
    u = f2u(x); u += 0x7fff + ((u >> 16) & 1); u &= 0xffff0000
    return struct.unpack('<f', struct.pack('<I', u))[0]

STG = 13680
CNT, SCR, CS = 0, 6400, 6656
KEYS = CS + 2 * STG
ACC = KEYS + 4 * STG
LISTB = ACC
LQ = 3584 * 4
NMAX = 60
WLO = [(-(-q * (1 << 32) // MAG_Q)) >> 9 for q in range(4)]

def per(q, A, B, C):
    t = ' | '.join((A, B, C)) + ' |'
    return t.replace('Q', str(q)).replace('O', str(q - 1)).replace('N', str(q + 1)).replace('Z', str(q + 2))
SCHED = {}
SCHED[0] = ' '.join([
    per(0, 'r0 g00 g01 hN0 hN1 g02 a00 hN2 hN3 hN4 g03 a01 hN5 hN6', 'sN gQ4 aQ2', 'pN0 lZ0 pN1 lZ1 gQ5 aQ3 pN2 lZ2 pN3 pN4 lZ3 pN5 lZ4 pN6 gQ6 aQ4 lZ5 pN7 lZ6 pN8'),
    per(1, 'rQ gQ0 aO5 gQ1 aO6 hN0 hN1 gQ2 aQ0 hN2 hN3 hN4 gQ3 aQ1 hN5 hN6', 'sN gQ4 aQ2', 'pN0 lZ0 pN1 lZ1 gQ5 aQ3 pN2 lZ2 pN3 pN4 lZ3 pN5 lZ4 pN6 gQ6 aQ4 lZ5 pN7 lZ6 pN8'),
    per(2, 'rQ gQ0 aO5 gQ1 aO6 hN0 hN1 gQ2 aQ0 hN2 hN3 hN4 gQ3 aQ1 hN5 hN6', 'sN gQ4 aQ2', 'pN0 pN1 gQ5 aQ3 pN2 pN3 pN4 pN5 pN6 gQ6 aQ4 pN7 pN8'),
    'r3 g30 a25 g31 a26 g32 a30 t0 g33 a31 g34 a32 t1 g35 a33 g36 a34 t2 a35 t3 a36 P0 P1 P2 P3'])
SCHED[1] = ' '.join([
    per(0, 'r0 g00 hN0 hN1 hN2 hN3 g01 hN4 hN5 hN6 a00 g02', 'sN aQ1 gQ3', 'pN0 lZ0 pN1 lZ1 pN2 lZ2 pN3 lZ3 aQ2 lZ4 pN4 lZ5 pN5 lZ6 pN6 aQ3 pN7 pN8 gQ4'),
    per(1, 'gO5 gO6 rQ aO4 gQ0 aO5 aO6 hN0 hN1 hN2 gQ1 hN3 hN4 hN5 hN6 aQ0 gQ2', 'sN aQ1 gQ3', 'pN0 lZ0 pN1 lZ1 pN2 lZ2 pN3 lZ3 aQ2 lZ4 pN4 lZ5 pN5 lZ6 pN6 aQ3 pN7 pN8 gQ4'),
    per(2, 'gO5 gO6 rQ aO4 gQ0 aO5 aO6 hN0 hN1 hN2 hN3 hN4 hN5 hN6 gQ1', 'sN aQ0 gQ2', 'gQ3 pN0 pN1 pN2 pN3 aQ1 gQ4 pN4 aQ2 pN5 pN6 pN7 pN8 gQ5'),
    'a23 g26 r3 a24 g30 a25 g31 a26 t0 t1 t2 t3 g32 a30 P0 g33 a31 P1 g34 a32 P2 g35 a33 P3 g36 a34 a35 a36'])
FIN = 'g25 g26 r3 a24 g30 a25 a26 t0 t1 t2 t3 g31 a30 g32 P0 a31 g33 P1 a32 g34 P2 a33 g35 P3 a34 g36 a35 a36'
P2 = per(2, 'gO5 gO6 rQ aO4 gQ0 aO5 aO6 hN0 hN1 hN2 hN3 hN4 hN5 hN6 gQ1', 'sN aQ0 gQ2', 'pN0 pN1 pN2 gQ3 pN3 aQ1 pN4 aQ2 pN5 gQ4 pN6 pN7 pN8 aQ3')
SCHED[2] = ' '.join([
    per(0, 'r0 g00 lZ0 hN0 hN1 hN2 hN3 g01 lZ1 hN4 hN5 hN6 a00', 'gQ2 lZ2 sN aQ1', 'gQ3 lZ3 pN0 pN1 pN2 pN3 aQ2 gQ4 lZ4 pN4 pN5 pN6 aQ3 pN7 pN8 lZ5 lZ6'),
    per(1, 'gO5 gO6 rQ aO4 lZ0 gQ0 aO5 aO6 lZ1 hN0 hN1 hN2 gQ1 lZ2 hN3 hN4 hN5 hN6 aQ0', 'gQ2 lZ3 sN aQ1', 'gQ3 lZ4 pN0 pN1 pN2 pN3 aQ2 gQ4 lZ5 pN4 pN5 pN6 aQ3 pN7 pN8 lZ6'),
    P2, FIN])
SCHED[3] = ' '.join([
    per(0, 'r0 g00 hN0 hN1 hN2 hN3 g01 hN4 hN5 hN6 a00', 'gQ2 sN aQ1', 'gQ3 pN0 pN1 aQ2 lZ0 pN2 lZ1 pN3 lZ2 pN4 lZ3 pN5 lZ4 pN6 lZ5 pN7 lZ6 pN8 gQ4 aQ3'),
    per(1, 'gO5 gO6 rQ aO4 gQ0 aO5 aO6 hN0 hN1 hN2 gQ1 hN3 hN4 hN5 hN6 aQ0', 'gQ2 sN aQ1', 'gQ3 pN0 pN1 aQ2 lZ0 pN2 lZ1 pN3 lZ2 pN4 lZ3 pN5 lZ4 pN6 lZ5 pN7 lZ6 pN8 gQ4 aQ3'),
    P2, FIN])
SCHED[4] = SCHED[3].replace(FIN, 'g25 g26 r3 a24 T g30 a25 a26 T t0 t1 t2 t3 g31 a30 T g32 P0 a31 T g33 P1 a32 T g34 P2 a33 T g35 P3 a34 T g36 a35 T a36')
SCHED[5] = SCHED[3].replace(FIN, 'g25 g26 r3 a24 T g30 a25 a26 T g31 a30 T g32 a31 T g33 a32 T g34 a33 T g35 a34 T g36 a35 T a36 t0 t1 t2 t3 P0 P1 P2 P3')
SCHED[6] = SCHED[3].replace(FIN, 'g25 g26 r3 a24 T g30 a25 g31 a26 T g32 a30 T g33 a31 T g34 a32 T g35 a33 T g36 a34 T a35 T a36 t0 t1 t2 t3 P0 P1 P2 P3')
def autoprio(sched, mode):
    out = []
    for iv in sched.split('|'):
        toks = iv.split()
        gs = [k for k, t in enumerate(toks) if t[0] == 'g' and t[2] != '6']
        n = len(gs); o = ['S3']; cur = 3; c = 0
        for k, t in enumerate(toks):
            o.append(t)
            if k in gs:
                c += 1
                p = max(0, 3 - (c * 3 + n - 1) // n) if n > 3 else 3 - c
                if p != cur: o.append(f'S{p}'); cur = p
        out.append(' '.join(o))
    return ' | '.join(out)
SCHED[7] = autoprio(SCHED[4], 0)
SCHED[8] = autoprio(SCHED[3], 0).split('|')
SCHED[8] = ' | '.join(SCHED[8][:-1]) + ' | S3 g25 S2 g26 r3 a24 T g30 S1 a25 a26 T t0 t1 t2 t3 g31 B S3 a30 T g32 S2 P0 a31 T g33 B S3 P1 a32 T g34 S2 P2 a33 T g35 S1 P3 a34 T g36 a35 T a36'
SCHED[9] = autoprio(SCHED[2], 0)
FIN2 = 'g25 g26 r3 a24 g30 a25 a26 M0 P0 g31 P1 a30 g32 P2 a31 g33 P3 a32 g34 a33 g35 a34 g36 a35 a36'
HN = 'hN0 hN1 hN2 hN3 hN4 hN5 hN6'
A0 = 'r0 g00 ' + HN; A1 = 'gO5 gO6 rQ aO4 gQ0 aO5 aO6 ' + HN
B1 = 'gQ1 sN aQ0'
C1 = 'gQ2 pN0 pN1 pN2 aQ1 gQ3 pN3 pN4 pN5 aQ2 pN6 pN7 gQ4 pN8 aQ3'
A0L = 'r0 g00 lZ0 hN0 lZ1 hN1 lZ2 hN2 lZ3 hN3 lZ4 hN4 lZ5 hN5 lZ6 hN6 E'
A1L = 'gO5 gO6 rQ aO4 gQ0 aO5 aO6 lZ0 hN0 lZ1 hN1 lZ2 hN2 lZ3 hN3 lZ4 hN4 lZ5 hN5 lZ6 hN6 E'
C1a = 'gQ2 pN0 pN1 aQ1 lZ0 pN2 lZ1 pN3 lZ2 pN4 lZ3 lZ4 pN5 lZ5 lZ6 E gQ3 aQ2 pN6 pN7 gQ4 pN8 aQ3'
C1b = 'gQ2 pN0 pN1 aQ1 gQ3 pN2 pN3 aQ2 gQ4 aQ3 lZ0 pN4 lZ1 pN5 lZ2 pN6 lZ3 pN7 lZ4 pN8 lZ5 lZ6 E'
def mk(a0, a1, b, c):
    return ' '.join([per(0, a0, b, c).replace('E', ''), per(1, a1, b, c).replace('E', 'e0 e1 e2 e3'), per(2, A1, B1, C1), FIN2])
SCHED[10] = mk(A0L, A1L, B1, C1)
SCHED[11] = mk(A0, A1, B1, C1a)
SCHED[12] = mk(A0, A1, B1, C1b)
for k in (10, 11, 12): SCHED[k + 10] = autoprio(SCHED[k], 0)

def gen_k2(P, name):
    svs = P.get('svs') or [P.get('sv', 0)]
    progs = []
    for v, sv in enumerate(svs):
        Q = dict(P); Q['sv'] = sv
        progs.append(gen_k2v(Q, name, v))
    def cut(pr):
        a = pr.index(';@R0'); b = pr.index(';@R1')
        return pr[:a], pr[a + 1:b], pr[b + 1:]
    pro, _, tl = cut(progs[0])
    V = len(svs)
    out = list(pro)
    if V > 1:
        sel = P.get('vsel', 3)
        out += [f'    s_lshr_b32 s100, s2, {sel}']
        if V == 3: out += ['    s_mul_i32 s101, s100, 86', '    s_lshr_b32 s101, s101, 8', '    s_mul_i32 s101, s101, 3', '    s_sub_u32 s100, s100, s101']
        else: out += [f'    s_and_b32 s100, s100, {V-1}']
        for v in range(1, V): out += [f'    s_cmp_eq_u32 s100, {v}', f'    s_cbranch_scc1 .Lvar{v}']
    for v in range(V):
        assert cut(progs[v])[0] == pro
        out += [f'.Lvar{v}:'] + cut(progs[v])[1]
        if v < V - 1: out += ['    s_branch .Lvend']
    out += ['.Lvend:'] + tl
    return out

def gen_k2v(P, name, VAR):
    LD = P.get('k2_ld', 'nt'); prof = P.get('prof', 0); WSB = P.get('wsb', 0)
    OST = P.get('k2_st', '')
    POS0, T4, KB, FOUR, MHI, NH, PV = 0, 1, 2, 3, 4, 5, 7
    LAY = P.get('lay', 0); PD = {0: 0, 1: 1024, 2: 64}[LAY]; PQ = 6 if LAY == 2 else POS0
    CP, MP, Y, AD, TT = 8, 10, 14, 22, 23
    RING = 24; NR = 3
    SP = [36, 37, 38, 39, 40, 41, 42, 43]
    X = [44, 72, 100, 44]
    S_WAVE, S_BK, S_TOT, S_MG, S_P21, S_ACC, S_T0, S_T1, S_T2 = 24, 25, 26, 30, 32, 33, 100, 101, 3
    W_RBF, W_SBF, W_DN, W_UP = 36, 52, 84, 92
    pc = [0]
    def stamp():
        if not prof: return []
        L = []
        if pc[0] > 0: L.append(f'    v_writelane_b32 v{PV}, s34, {pc[0]-1}')
        pc[0] += 1
        return L + ['    s_memrealtime s[34:35]']
    def bar(st=True): return ['    s_waitcnt lgkmcnt(0)', '    s_barrier'] + (stamp() if st else [])
    FULL = '    s_mov_b64 exec, -1'
    def tri(q, j): return X[q] + 4 * j
    def areg(q, j): return tri(q, j) + (3 if q == 3 else 0)

    def wloads():
        return ['    s_load_dwordx8 s[4:11], s[0:1], 56', '    s_waitcnt lgkmcnt(0)'] + wloads2()
    def wloads2():
        return [f'    s_load_dwordx16 s[{W_RBF}:{W_RBF+15}], s[4:5], 0',
                f'    s_load_dwordx16 s[{W_SBF}:{W_SBF+15}], s[6:7], 0',
                f'    s_load_dwordx16 s[{W_SBF+16}:{W_SBF+31}], s[6:7], 64',
                f'    s_load_dwordx8 s[{W_DN}:{W_DN+7}], s[8:9], 0',
                f'    s_load_dwordx8 s[{W_UP}:{W_UP+7}], s[10:11], 0']
    def wreg(o, rp):
        if o < 8:
            l, d = o >> 2, o & 3
            return W_SBF + ((4 * rp + l) * 2 + (d >> 1)) + (4 if d & 1 else 0)
        d = o - 8
        return W_RBF + ((2 * rp) * 2 + (d >> 1)) + (2 if d & 1 else 0)
    def repack():
        L = []
        for rp in range(4):
            for o in (0, 2, 4, 6, 8, 10):
                a, b = wreg(o, rp), wreg(o + 1, rp)
                L += [f'    s_pack_ll_b32_b16 s{S_T0}, s{a}, s{b}', f'    s_pack_hh_b32_b16 s{b}, s{a}, s{b}', f'    s_mov_b32 s{a}, s{S_T0}']
        return L

    def rec_load(q, j):
        t = tri(q, j)
        return [f'    buffer_load_dwordx3 v[{t}:{t+2}], v{areg(q,j)}, s[4:7], 0 offen {LD}']
    PFA = [75, 79, 83, 87]; PFM = 91; PFI = 95; DUM = 6
    PFLD = P.get('pf_ld', '')
    def pf_info():
        return [f'    s_lshl_b32 s{S_T0}, s{S_WAVE}, 5', f'    s_lshr_b32 s{S_T1}, s2, 3', f'    s_add_u32 s{S_T0}, s{S_T0}, s{S_T1}',
                f'    s_mul_i32 s{S_T2}, s{S_T0}, {CHB}', f'    s_lshl_b32 s{S_T0}, s{S_T0}, 12',
                f'    s_and_b32 s{S_T1}, s2, 7', f'    s_lshl_b32 s{S_T1}, s{S_T1}, 9', f'    s_add_u32 s{S_T0}, s{S_T0}, s{S_T1}',
                f'    v_and_b32 v{PFI}, 3, v0', f'    v_bfe_u32 v{PFM}, v0, 2, 1', f'    v_mul_u32_u24 v{PFM}, 124, v{PFM}',
                f'    v_add_lshl_u32 v{PFI}, v{PFI}, v{PFM}, 2',
                f'    buffer_load_dword v{PFI}, v{PFI}, s[12:15], s{S_T0} offen',
                f'    v_and_b32 v{PFA[3]}, 63, v0', f'    v_lshlrev_b32 v{PFA[3]}, 7, v{PFA[3]}',
                f'    s_lshr_b32 s{S_T1}, s2, 3', f'    s_mul_i32 s{S_T1}, s{S_T1}, 6400', f'    s_mul_i32 s{S_T0}, s{S_WAVE}, 400',
                f'    s_add_u32 s{S_T0}, s{S_T0}, s{S_T1}',
                f'    v_lshrrev_b32 v{PFM}, 3, v{PFA[3]}', f'    v_cmp_gt_u32 vcc, 400, v{PFM}', f'    v_add_u32 v{PFM}, s{S_T0}, v{PFM}',
                f'    v_mov_b32 v{PFA[0]}, 0x1000000', f'    v_cndmask_b32 v{PFM}, v{PFA[0]}, v{PFM}, vcc']
    def pf_addr():
        L = []
        for q in range(4):
            L += [f'    v_readlane_b32 s{S_T0}, v{PFI}, {q}', f'    v_readlane_b32 s{S_T1}, v{PFI}, {4+q}',
                  f'    s_and_b32 s{S_T0}, s{S_T0}, 0xffff', f'    s_lshr_b32 s{S_T1}, s{S_T1}, 16',
                  f'    s_mul_i32 s{S_T0}, s{S_T0}, 12', f'    s_mul_i32 s{S_T1}, s{S_T1}, 12',
                  f'    s_and_b32 s{S_T0}, s{S_T0}, -128', f'    s_sub_u32 s{S_T1}, s{S_T1}, s{S_T0}',
                  f'    s_add_u32 s{S_T0}, s{S_T0}, s{S_T2}',
                  f'    v_cmp_gt_u32 vcc, s{S_T1}, v{PFA[3]}', f'    v_add_u32 v{PFA[q]}, s{S_T0}, v{PFA[3]}',
                  f'    v_cndmask_b32 v{PFA[q]}, -16, v{PFA[q]}, vcc']
            if q == 0: L += pf_rec(0)
        return L
    def pf_rec(q):
        if not P.get('pf', 0) & 1: return []
        return [f'    buffer_load_dword v{DUM}, v{PFA[q]}, s[4:7], 0 offen {PFLD} ; nodep']
    def pf_m(q):
        if not P.get('pf', 0) & 2: return []
        return [f'    buffer_load_dword v{DUM}, v{PFM}, s[8:11], 0 idxen ; nodep', f'    v_add_u32 v{PFM}, 200000, v{PFM}']
    def coff(q): return CNT + 1600 * q - 4 * WLO[q]
    def hist(q, j):
        t = tri(q, j); a, b = SP[6], SP[7]
        return [f'    v_lshrrev_b32 v{a}, 19, v{t}', f'    v_lshrrev_b32 v{b}, 19, v{t+1}',
                f'    v_and_b32 v{a}, -4, v{a}', f'    v_and_b32 v{b}, -4, v{b}',
                f'    v_cmpx_ne_u32 vcc, 0, v{t}', f'    ds_add_u32 v{a}, v{FOUR} offset:{coff(q)}',
                f'    v_cmpx_ne_u32 vcc, 0, v{t+1}', f'    ds_add_u32 v{b}, v{FOUR} offset:{coff(q)}', FULL]
    def place(q, d=2):
        G = []
        for s in range(7 + d):
            g = []
            if s >= d:
                t = tri(q, s - d); a, b = SP[2 * ((s - d) % 3)], SP[2 * ((s - d) % 3) + 1]
                g += [f'    v_cmpx_ne_u32 vcc, 0, v{t}', f'    ds_write_b32 v{a}, v{t} offset:{KEYS}',
                      f'    v_lshrrev_b32 v{a}, 1, v{a}', f'    ds_write_b16 v{a}, v{t+2} offset:{CS}',
                      f'    v_cmpx_ne_u32 vcc, 0, v{t+1}', f'    ds_write_b32 v{b}, v{t+1} offset:{KEYS}',
                      f'    v_lshrrev_b32 v{b}, 1, v{b}', f'    ds_write_b16_d16_hi v{b}, v{t+2} offset:{CS}', FULL]
            if s < 7:
                t = tri(q, s); a, b = SP[2 * (s % 3)], SP[2 * (s % 3) + 1]
                g += [f'    v_lshrrev_b32 v{a}, 19, v{t}', f'    v_lshrrev_b32 v{b}, 19, v{t+1}',
                      f'    v_and_b32 v{a}, -4, v{a}', f'    v_and_b32 v{b}, -4, v{b}',
                      f'    v_cmpx_ne_u32 vcc, 0, v{t}', f'    ds_add_rtn_u32 v{a}, v{a}, v{FOUR} offset:{coff(q)}',
                      f'    v_cmpx_ne_u32 vcc, 0, v{t+1}', f'    ds_add_rtn_u32 v{b}, v{b}, v{FOUR} offset:{coff(q)}', FULL]
            G.append(g)
        return G
    def wscan(q):
        c = Y; a, s, o = AD, TT, CP
        wv = P.get('scanwave', [0, 5, 10, 15])[q]
        L = [f'    s_cmp_lg_u32 s{S_WAVE}, {wv}', f'    s_cbranch_scc1 .Lsc{q}_{VAR if q else 0}',
             f'    v_and_b32 v{a}, 0xff, v{T4}', f'    v_lshlrev_b32 v{a}, 3, v{a}', '    s_bfm_b64 exec, 50, 0',
             f'    ds_read_b128 v[{c}:{c+3}], v{a} offset:{CNT+1600*q}',
             f'    ds_read_b128 v[{c+4}:{c+7}], v{a} offset:{CNT+1600*q+16}']
        for i in range(1, 8): L.append(f'    v_add_u32 v{c+i}, v{c+i}, v{c+i-1}')
        L.append(f'    v_mov_b32 v{s}, v{c+7}')
        L += dpp_scan('v_add_u32', s)
        L.append(f'    v_sub_u32 v{s}, v{s}, v{c+7}')
        for i in range(7, 0, -1): L.append(f'    v_add_u32 v{c+i}, v{s}, v{c+i-1}')
        L += [f'    v_mov_b32 v{c}, v{s}',
              f'    ds_write_b128 v{a}, v[{c}:{c+3}] offset:{CNT+1600*q}',
              f'    ds_write_b128 v{a}, v[{c+4}:{c+7}] offset:{CNT+1600*q+16}',
              FULL, '    s_waitcnt lgkmcnt(0)', f'.Lsc{q}_{VAR if q else 0}:']
        return L
    def readback(q):
        G = [[f'    ds_read_b32 v{SP[6]}, v{FOUR} offset:{CNT+1600*q+399*4-4}']]
        if LAY: G = [[f'    ds_read_b32 v{SP[7]}, v{FOUR} offset:{CNT+1600*q+399*4-4}']]
        for j in range(7):
            t = tri(q, j)
            if LAY:
                G.append([f'    ds_read2st64_b32 v[{t}:{t+1}], v{KB} offset0:{32*j} offset1:{32*j+PD//64}',
                          f'    ds_read_u16 v{t+2}, v{PQ} offset:{CS+4096*j}', f'    ds_read_u16 v{SP[j]}, v{PQ} offset:{CS+4096*j+2*PD}'])
            else:
                G.append([f'    ds_read_b64 v[{t}:{t+1}], v{KB} offset:{8192*j}', f'    ds_read_b32 v{t+2}, v{T4} offset:{CS+4096*j}'])
        if LAY:
            G.append([f'    v_readfirstlane_b32 s{S_TOT+q}, v{SP[7]}', f'    s_lshr_b32 s{S_TOT+q}, s{S_TOT+q}, 1'])
            G.append([f'    v_lshl_or_b32 v{tri(q,j)+2}, v{SP[j]}, 16, v{tri(q,j)+2}' for j in range(7)])
        else: G.append([f'    v_readfirstlane_b32 s{S_TOT+q}, v{SP[6]}', f'    s_lshr_b32 s{S_TOT+q}, s{S_TOT+q}, 2'])
        return G
    gi = [0]; gmap = {}
    def gather(q, j):
        r = RING + 4 * (gi[0] % NR); gi[0] += 1
        assert r not in gmap.values(), (q, j)
        gmap[(q, j)] = r
        t = tri(q, j)
        if LAY:
            return [f'    s_sub_u32 s{S_T0}, s{S_TOT+q}, {4096*j}', f'    s_sub_u32 s{S_T1}, s{S_TOT+q}, {4096*j+2*PD}',
                f'    v_lshrrev_b32 v{r}, 12, v{t}', f'    v_lshrrev_b32 v{r+2}, 12, v{t+1}',
                f'    v_cmpx_gt_i32 vcc, s{S_T0}, v{PQ}',
                f'    buffer_load_dwordx2 v[{r}:{r+1}], v{r}, s[8:11], 0 idxen',
                f'    v_cmpx_gt_i32 vcc, s{S_T1}, v{PQ}',
                f'    buffer_load_dwordx2 v[{r+2}:{r+3}], v{r+2}, s[8:11], 0 idxen', FULL]
        return [f'    s_sub_u32 s{S_T0}, s{S_TOT+q}, {2048*j}',
                f'    v_lshrrev_b32 v{r}, 12, v{t}', f'    v_lshrrev_b32 v{r+2}, 12, v{t+1}',
                f'    v_cmpx_gt_i32 vcc, s{S_T0}, v{POS0}',
                f'    buffer_load_dwordx2 v[{r}:{r+1}], v{r}, s[8:11], 0 idxen',
                f'    buffer_load_dwordx2 v[{r+2}:{r+3}], v{r+2}, s[8:11], 0 idxen', FULL]
    def acc1(k, cc, h, g):
        mg = f's[{S_MG}:{S_MG+1}]'
        return [f'    v_cvt_f32_i32_sdwa v{CP}, sext(v{cc}) dst_sel:DWORD dst_unused:UNUSED_PAD src0_sel:WORD_{h}',
                f'    v_and_b32 v{AD}, 0xfff, v{k}',
                f'    v_fma_f32 v{CP+1}, v{CP}, v{CP}, v{NH}',
                f'    v_mad_u32_u24 v{AD}, v{AD}, 24, s{S_ACC}',
                f'    v_lshlrev_b32 v{MP}, 16, v{g}', f'    v_and_b32 v{MP+1}, v{MHI}, v{g}',
                f'    v_lshlrev_b32 v{MP+2}, 16, v{g+1}', f'    v_and_b32 v{MP+3}, v{MHI}, v{g+1}',
                f'    v_pk_fma_f32 v[{Y}:{Y+1}], v[{CP}:{CP+1}], v[{MP}:{MP+1}], {mg} op_sel_hi:[1,0,1]',
                f'    v_pk_fma_f32 v[{Y+2}:{Y+3}], v[{CP}:{CP+1}], v[{MP}:{MP+1}], {mg} op_sel:[0,1,0]',
                f'    v_pk_fma_f32 v[{Y+4}:{Y+5}], v[{CP}:{CP+1}], v[{MP+2}:{MP+3}], {mg} op_sel_hi:[1,0,1]',
                f'    v_pk_fma_f32 v[{Y+6}:{Y+7}], v[{CP}:{CP+1}], v[{MP+2}:{MP+3}], {mg} op_sel:[0,1,0]',
                f'    v_lshlrev_b32 v{Y+1}, 10, v{Y+1}',
                f'    v_lshlrev_b32 v{Y+5}, 10, v{Y+5}',
                f'    v_mad_u64_u32 v[{Y}:{Y+1}], vcc, v{Y+2}, s{S_P21}, v[{Y}:{Y+1}]',
                f'    v_lshl_or_b32 v{Y+6}, v{Y+6}, 9, 1',
                f'    ds_add_u64 v{AD}, v[{Y}:{Y+1}]',
                f'    v_mad_u64_u32 v[{Y+4}:{Y+5}], vcc, v{Y+3}, s{S_P21}, v[{Y+4}:{Y+5}]',
                f'    ds_add_u64 v{AD}, v[{Y+6}:{Y+7}] offset:16',
                f'    ds_add_u64 v{AD}, v[{Y+4}:{Y+5}] offset:8']
    def acc(q, j):
        t = tri(q, j); r = gmap.pop((q, j))
        o0, o1 = (4096 * j, 4096 * j + 2 * PD) if LAY else (2048 * j, 2048 * j + 1)
        return ([f'    s_sub_u32 s{S_T0}, s{S_TOT+q}, {o0}', f'    s_sub_u32 s{S_T1}, s{S_TOT+q}, {o1}',
                 f'    v_cmpx_gt_i32 vcc, s{S_T0}, v{PQ}'] + acc1(t, t + 2, 0, r) +
                [f'    v_cmpx_gt_i32 vcc, s{S_T1}, v{PQ}'] + acc1(t + 1, t + 2, 1, r + 2) + [FULL])

    PR, MR, DR = 72, 120, 36
    def tail_loads():
        G = []
        for i in range(4):
            G.append([f'    v_lshlrev_b32 v{MR+2*i}, 1, v{T4}', f'    s_movk_i32 s{S_T0}, {8192*i}', f'    s_movk_i32 s{S_T1}, {2048*i}',
                      f'    buffer_load_dwordx2 v[{MR+2*i}:{MR+2*i+1}], v{MR+2*i}, s[12:15], s{S_T0} offen',
                      f'    buffer_load_ushort v{DR+i}, v{POS0}, s[16:19], s{S_T1} offen'])
        return G
    SQ = math.sqrt(10.0 * math.log2(math.e))
    def pstage(i):
        d = DR + i; t = Y; pk = MP
        G = [[f'    v_lshlrev_b32 v{d}, 16, v{d}', f'    v_mul_f32 v{d}, 0x{f2u(SQ):08x}, v{d}']]
        g = G[0]
        for r in range(8): g.append(f'    v_add_f32 v{t+r}, 0x{f2u(-bf16r(r/7.0)*SQ):08x}, v{d}' if r else f'    v_mov_b32 v{t}, v{d}')
        for r in range(8): g.append(f'    v_mul_f32 v{t+r}, v{t+r}, v{t+r}')
        for r in range(8): g.append(f'    v_exp_f32_e64 v{t+r}, -v{t+r}')
        for rp in range(4): g.append(f'    v_cvt_pk_bf16_f32 v{pk+rp}, v{t+2*rp}, v{t+2*rp+1}')
        for rp in range(4):
            for o in range(12):
                x = PR + 12 * i + o
                g.append(f'    v_dot2_f32_bf16 v{x}, v{pk+rp}, s{wreg(o,rp)}, ' + ('0' if rp == 0 else f'v{x}'))
        return g
    WD, WU = 52, 68
    def wunpack():
        L = []
        for z in range(8):
            L += [f'    s_lshl_b32 s{WD+2*z}, s{W_DN+z}, 16', f'    s_and_b32 s{WD+2*z+1}, s{W_DN+z}, 0xffff0000',
                  f'    s_lshl_b32 s{WU+2*z}, s{W_UP+z}, 16', f'    s_and_b32 s{WU+2*z+1}, s{W_UP+z}, 0xffff0000']
        return L
    AR, BR, WR, KC, NB, SUM, EA = 8, 16, 24, 44, 52, 40, 41
    def dec_consts():
        return [f'    s_lshr_b32 s{S_T0}, s{S_MG}, 23', f'    s_lshr_b32 s{S_T1}, s{S_MG+1}, 23',
                f'    s_sub_u32 s{S_T2}, s{S_T0}, 23', f'    s_lshl_b32 s{S_T2}, s{S_T2}, 23',
                f'    v_mov_b32 v{KC}, s{S_T2}',
                f'    v_mul_f32 v{KC}, 0x{f2u(1.0/32767):08x}, v{KC}',
                f'    v_mul_f32 v{KC+1}, 0x{f2u(32768.0/32767):08x}, v{KC}',
                f'    s_lshl_b32 s{S_T0}, s{S_T0}, 2', f'    s_lshl_b32 s{S_T1}, s{S_T1}, 2',
                f'    s_add_u32 s{S_T0}, s{S_T0}, 16384', f'    s_add_u32 s{S_T1}, s{S_T1}, 16384',
                f'    v_cvt_f32_u32 v{NB}, s{S_T0}', f'    v_cvt_f32_u32 v{NB+1}, s{S_T1}',
                f'    v_mul_f32 v{KC+2}, 0x{f2u(-16384.0):08x}, v{KC}',
                f'    v_mul_f32_e64 v{KC+3}, -v{NB}, v{KC}',
                f'    v_mul_f32_e64 v{KC+4}, -v{NB}, v{KC+1}',
                f'    v_mul_f32_e64 v{KC+5}, -v{NB+1}, v{KC+1}',
                f'    v_mul_f32 v{KC+6}, 0x{f2u(-16384.0):08x}, v{KC+1}',
                f'    v_mov_b32 v{SUM}, 0',
                f'    v_mul_u32_u24 v{EA}, 6, v{T4}', f'    v_add_u32 v{EA}, {ACC+24}, v{EA}']
    def front_fast(i):
        w = WR; n = WR + 6; M21 = 0x1fffff
        L = []
        if i == 2: L.append(f'    v_add_u32 v{EA}, {2*24576}, v{EA}')
        o = 24576 * (i & 1)
        L += [f'    ds_read_b64 v[{w+4}:{w+5}], v{EA} offset:{o+16}', f'    ds_read_b64 v[{w}:{w+1}], v{EA} offset:{o}',
              f'    ds_read_b64 v[{w+2}:{w+3}], v{EA} offset:{o+8}',
              f'    v_and_b32 v{n}, 0x1ff, v{w+4}',
              f'    v_add_u32 v{SUM}, v{SUM}, v{n}',
              f'    v_cmp_lt_u32 vcc, {NMAX}, v{n}',
              f'    v_cvt_f32_u32 v{n}, v{n}',
              f'    v_lshrrev_b32 v{AR+3}, 9, v{w+4}', f'    v_and_b32 v{AR+7}, 0x7fffff, v{w+5}',
              f'    s_cbranch_vccz .Lnp{i}', f'    v_add_u32 v{SUM}, 0x100000, v{SUM}', f'.Lnp{i}:']
        for z in range(5): L.append(f'    v_mul_f32 v{NB+z}, v{n}, v{KC+2+z}')
        L += [f'    v_and_b32 v{AR}, {M21}, v{w}', f'    v_alignbit_b32 v{AR+1}, v{w+1}, v{w}, 21', f'    v_lshrrev_b32 v{AR+4}, 10, v{w+1}',
              f'    v_and_b32 v{AR+2}, {M21}, v{w+2}', f'    v_alignbit_b32 v{AR+5}, v{w+3}, v{w+2}, 21', f'    v_lshrrev_b32 v{AR+6}, 10, v{w+3}',
              f'    v_and_b32 v{AR+1}, {M21}, v{AR+1}', f'    v_and_b32 v{AR+5}, {M21}, v{AR+5}']
        for z in range(8): L.append(f'    v_cvt_f32_u32 v{AR+z}, v{AR+z}')
        comb = [0, 1, 0, 0, 2, 2, 3, 4]
        for z in range(8): L.append(f'    v_fma_f32 v{AR+z}, v{AR+z}, v{KC+(z>>2)}, v{NB+comb[z]}')
        return L
    def front_slow(i):
        L = []
        if i == 2: L.append(f'    v_add_u32 v{EA}, 65536, v{EA}')
        o = 32768 * (i & 1)
        return L + [f'    ds_read_b128 v[{AR}:{AR+3}], v{EA} offset:{o}', f'    ds_read_b128 v[{AR+4}:{AR+7}], v{EA} offset:{o+16}']
    def bsel(k): return ('op_sel:[1,0,0]' if k & 1 else 'op_sel_hi:[0,1,1]')
    def back(i):
        L = []; p = PR + 12 * i; ag = WR; up = WR + 4; m = MR + 2 * i
        for k in range(4):
            for l in range(2):
                for dp in range(2):
                    b = BR + 4 * l + 2 * dp; a = AR + 4 * l + (k & 2); w = WD + 4 * k + 2 * dp
                    if k == 0: L.append(f'    v_pk_mul_f32 v[{b}:{b+1}], v[{a}:{a+1}], s[{w}:{w+1}] op_sel_hi:[0,1]')
                    else: L.append(f'    v_pk_fma_f32 v[{b}:{b+1}], v[{a}:{a+1}], s[{w}:{w+1}], v[{b}:{b+1}] {bsel(k)}')
        for d in range(4): L.append(f'    v_mul_f32 v{ag+d}, v{p+d}, v{BR+d}')
        for d in range(4): L.append(f'    v_fmac_f32 v{ag+d}, v{p+4+d}, v{BR+4+d}')
        L += [f'    v_lshlrev_b32 v{AR}, 16, v{m}', f'    v_and_b32 v{AR+1}, v{MHI}, v{m}',
              f'    v_lshlrev_b32 v{AR+2}, 16, v{m+1}', f'    v_and_b32 v{AR+3}, v{MHI}, v{m+1}']
        for k in range(4):
            for dp in range(2):
                b = up + 2 * dp; a = ag + (k & 2); w = WU + 4 * k + 2 * dp
                if k == 0: L.append(f'    v_pk_mul_f32 v[{b}:{b+1}], v[{a}:{a+1}], s[{w}:{w+1}] op_sel_hi:[0,1]')
                else: L.append(f'    v_pk_fma_f32 v[{b}:{b+1}], v[{a}:{a+1}], s[{w}:{w+1}], v[{b}:{b+1}] {bsel(k)}')
        for d in range(4): L.append(f'    v_fmac_f32 v{AR+d}, v{up+d}, v{p+8+d}')
        L += [f'    v_cvt_pk_bf16_f32 v{m}, v{AR}, v{AR+1}', f'    v_cvt_pk_bf16_f32 v{m+1}, v{AR+2}, v{AR+3}',
              f'    v_lshlrev_b32 v{BR}, 1, v{T4}', f'    s_movk_i32 s{S_T0}, {8192*i}',
              f'    buffer_store_dwordx2 v[{m}:{m+1}], v{BR}, s[20:23], s{S_T0} offen {OST}']
        return L
    def tail(front, tag):
        L = []
        for i in range(3): L += front(i) + back(i)
        L += [f'    s_cmp_lg_u32 s{S_WAVE}, 0', f'    s_cbranch_scc1 .Lt3{tag}', '    s_bfm_b64 exec, 53, 0']
        L += front(3) + back(3) + [FULL, '    s_waitcnt lgkmcnt(0)', f'.Lt3{tag}:']
        return L
    def pall(tag):
        L = []
        for i in range(3): L += pstage(i)
        L += [f'    s_waitcnt vmcnt(0)', f'    s_cmp_lg_u32 s{S_WAVE}, 0', f'    s_cbranch_scc1 .Lp3{tag}'] + pstage(3) + [f'.Lp3{tag}:']
        return L

    L = [name + ':', '    s_cmp_ge_u32 s2, 256', '    s_cbranch_scc1 .Lk2_end',
         '    s_load_dwordx2 s[26:27], s[0:1], 104', '    s_load_dwordx2 s[28:29], s[0:1], 0',
         '    s_load_dwordx2 s[30:31], s[0:1], 24', '    s_load_dwordx2 s[32:33], s[0:1], 88',
         '    s_load_dwordx8 s[4:11], s[0:1], 56']
    if prof: L += ['    s_memtime s[34:35]', f'    v_writelane_b32 v{PV}, s34, 30']
    L += stamp()
    E0, MX, CB, T16, U, S, SI = 8, 12, 16, 17, 18, 19, 20
    L += [f'    v_lshrrev_b32 v{E0}, 6, v0', f'    v_lshlrev_b32 v{T16}, 4, v0', f'    v_and_b32 v{CB}, 0x1ff, v0',
          f'    v_readfirstlane_b32 s{S_WAVE}, v{E0}',
          f'    v_lshlrev_b32 v{E0}, 12, v{CB}',
          f'    s_and_b32 s{S_BK}, s2, 7', f'    s_lshl_b32 s{S_BK}, s{S_BK}, 5', f'    s_lshr_b32 s{S_T0}, s2, 3', f'    s_add_u32 s{S_BK}, s{S_BK}, s{S_T0}',
          f'    s_lshl_b32 s{S_T0}, s{S_BK}, 4', f'    s_and_b32 s{S_T1}, s{S_WAVE}, 8', f'    s_add_u32 s{S_T0}, s{S_T0}, s{S_T1}',
          '    s_waitcnt lgkmcnt(0)']
    L += srd(12, 26, None, 500 * 4096, WSB + META)
    L += [f'    buffer_load_dwordx2 v[{E0}:{E0+1}], v{E0}, s[12:15], s{S_T0} offen']
    if P.get('pf'): L += pf_info()
    L += srd(16, 26, None, 16000, WSB + META + MAXO)
    L += [f'    buffer_load_dwordx4 v[{MX}:{MX+3}], v{T16}, s[16:19], 0 offen']
    L += wloads2()
    L += srd(4, 26, None, 500 * CHB, WSB)
    L += ['    s_mov_b32 s8, s28', '    s_or_b32 s9, s29, 0x80000', '    s_mov_b32 s10, 800000', '    s_mov_b32 s11, 0x00020000']
    L += [f'    s_mul_i32 s{S_T0}, s{S_BK}, 25000', f'    s_mul_i32 s{S_T1}, s{S_BK}, 6250']
    L += srd(12, 28, S_T0, 25000) + srd(20, 32, S_T0, 25000) + srd(16, 30, S_T1, 6250)
    F = 24
    L += [f'    v_lshlrev_b32 v{T4}, 2, v0', f'    v_lshlrev_b32 v{KB}, 3, v0', f'    v_lshlrev_b32 v{POS0}, 1, v0',
          f'    v_mov_b32 v{F}, 0', f'    v_mov_b32 v{F+1}, 0',
          f'    ds_write_b64 v{KB}, v[{F}:{F+1}]',
          f'    v_bfrev_b32 v{F+4}, 1', f'    v_bfrev_b32 v{F+5}, 1', f'    v_bfrev_b32 v{F+6}, 1', f'    v_bfrev_b32 v{F+7}, 1',
          f'    v_add_u32 v{T16}, {LISTB}, v{T16}']
    for z in range(4): L.append(f'    ds_write_b128 v{T16}, v[{F+4}:{F+7}] offset:{16384*z}')
    if LAY == 1: L += [f'    v_mov_b32 v{KB}, v{T4}']
    if LAY == 2: L += [f'    s_lshl_b32 s{S_T0}, s{S_WAVE}, 7', f'    v_add_u32 v{PQ}, s{S_T0}, v{POS0}', f'    v_lshlrev_b32 v{KB}, 1, v{PQ}']
    L += [f'    v_add_u32 v{KB}, {KEYS}, v{KB}', f'    v_mov_b32 v{FOUR}, 4', f'    v_mov_b32 v{MHI}, 0xffff0000',
          f'    v_mov_b32 v{NH}, 0x{f2u(-32767.0*32767.0/2):08x}',
          f'    s_mov_b32 s{S_T0}, {CHB}', f'    v_mul_u32_u24 v{CB}, s{S_T0}, v{CB}',
          f'    s_mov_b32 s{S_P21}, 0x200000', f'    s_mov_b32 s{S_ACC}, {ACC}']
    if P.get('pf'): L += pf_addr() + pf_m(0)
    L += bar(False)
    N0, N1, B0, B1 = 28, 29, 30, 31
    L += [f'    v_lshrrev_b32 v{N0}, 16, v{E0}', f'    v_lshrrev_b32 v{N1}, 16, v{E0+1}',
          f'    v_and_b32 v{E0}, 0xffff, v{E0}', f'    v_and_b32 v{E0+1}, 0xffff, v{E0+1}',
          f'    v_sub_u32 v{N0}, v{N0}, v{E0}', f'    v_sub_u32 v{N1}, v{N1}, v{E0+1}',
          f'    v_mad_u32_u24 v{B0}, v{E0}, 12, v{CB}', f'    v_mad_u32_u24 v{B1}, v{E0+1}, 12, v{CB}',
          f'    v_max_u32 v{E0}, v{N0}, v{N1}', f'    v_cmp_lt_u32 vcc, 64, v{E0}',
          f'    v_min_u32 v{N0}, 64, v{N0}', f'    v_min_u32 v{N1}, 64, v{N1}',
          f'    v_lshl_or_b32 v{SI+1}, v{N1}, 16, v{N0}',
          f'    v_add_u32 v{S}, 0x10001, v{SI+1}', f'    v_lshrrev_b32 v{S}, 1, v{S}', f'    v_and_b32 v{S}, 0x7fff7fff, v{S}',
          f'    v_mov_b32 v{SI}, v{S}',
          f'    v_max3_u32 v{MX}, v{MX}, v{MX+1}, v{MX+2}', f'    v_max_u32 v{MX}, v{MX}, v{MX+3}',
          f'    v_cndmask_b32 v{SI+2}, v{MX}, v{MHI}, vcc']
    for z in zip(dpp_scan('v_add_u32', SI), dpp_scan('v_add_u32', SI + 1), dpp_scan('v_max_u32', SI + 2)): L += list(z)
    L += [f'    s_lshl_b32 s{S_T0}, s{S_WAVE}, 4', f'    v_mov_b32 v{E0}, s{S_T0}',
          '    s_mov_b32 exec_lo, 0', '    s_brev_b32 exec_hi, 1',
          f'    ds_write_b96 v{E0}, v[{SI}:{SI+2}] offset:{SCR}', FULL,
          f'    v_and_b32 v{E0}, 60, v{T4}', f'    v_lshlrev_b32 v{E0}, 2, v{E0}',
          f'    v_sub_u32 v{S}, v{SI}, v{S}']
    L += bar()
    R = 12
    L += [f'    ds_read_b96 v[{R}:{R+2}], v{E0} offset:{SCR}', f'    v_mov_b32 v{R+3}, v{R}']
    for z in zip(dpp_scan('v_add_u32', R, False), dpp_scan('v_add_u32', R + 1, False), dpp_scan('v_max_u32', R + 2, False)): L += list(z)
    L += [f'    v_sub_u32 v{R+3}, v{R}, v{R+3}',
          f'    v_readlane_b32 s26, v{R}, 7', f'    v_readlane_b32 s27, v{R}, 15',
          f'    v_readlane_b32 s28, v{R+1}, 7', f'    v_readlane_b32 s29, v{R+1}, 15',
          f'    v_readlane_b32 s{S_MG}, v{R+2}, 15', f'    v_readlane_b32 s{S_T2}, v{R+3}, s{S_WAVE}',
          '    s_sub_u32 s27, s27, s26', '    s_sub_u32 s29, s29, s28',
          f'    s_cmp_ge_u32 s{S_WAVE}, 8', f'    s_cselect_b32 s{S_T0}, s26, 0', f'    s_cselect_b32 s{S_T1}, {2*LQ}, 0', f'    s_add_u32 s{S_T1}, s{S_T1}, {LISTB}',
          f'    s_sub_u32 s{S_T2}, s{S_T2}, s{S_T0}',
          f'    v_add_u32 v{S}, s{S_T2}, v{S}']
    for r, cap in ((26, 3584), (27, 3584), (28, STG // 2), (29, STG // 2)):
        L += [f'    s_and_b32 s{S_T0}, s{r}, 0xffff', f'    s_lshr_b32 s{r}, s{r}, 16', f'    s_max_u32 s{r}, s{r}, s{S_T0}',
              f'    s_cmp_gt_u32 s{r}, {cap}', '    s_cbranch_scc1 .Lslow']
    L += [f'    s_lshr_b32 s{S_MG}, s{S_MG}, 7', f'    s_cmp_gt_u32 s{S_MG}, 215', '    s_cbranch_scc1 .Lslow',
          f'    s_lshl_b32 s{S_MG}, s{S_MG}, 23',
          f'    s_add_u32 s{S_MG+1}, s{S_MG}, {(39<<23)+0x4000}', f'    s_add_u32 s{S_MG}, s{S_MG}, {(25<<23)+0x4000}']
    A0, A1, RM = 8, 9, 10
    L += [f'    v_and_b32 v{A0}, 0xffff, v{S}', f'    v_lshrrev_b32 v{A1}, 16, v{S}',
          f'    v_lshl_add_u32 v{A0}, v{A0}, 2, s{S_T1}', f'    v_lshl_add_u32 v{A1}, v{A1}, 2, s{S_T1}']
    for z, (a, b, n) in enumerate(((A0, B0, N0), (A1, B1, N1))):
        o = LQ * z
        L += [f'    v_mov_b32 v{RM}, v{n}', f'    v_cmpx_lt_i32 vcc, 0, v{RM}', f'.Lll{z}:',
              f'    ds_write_b32 v{a}, v{b} offset:{o}', f'    v_add_u32 v{RM}, -2, v{RM}',
              f'    v_add_u32 v{a}, 4, v{a}', f'    v_add_u32 v{b}, 24, v{b}',
              f'    v_cmpx_lt_i32 vcc, 0, v{RM}', f'    s_cbranch_execnz .Lll{z}', FULL,
              f'    v_add_u32 v{a}, -4, v{a}', f'    v_add_u32 v{b}, {(1<<30)-24}, v{b}',
              f'    v_cmpx_ne_u32 vcc, 0, v{RM}', f'    ds_write_b32 v{a}, v{b} offset:{o}', FULL]
    LA_, LC = 11, 12
    L += [f'    v_and_b32 v{LA_}, -4, v{POS0}', f'    v_add_u32 v{LA_}, {LISTB}, v{LA_}',
          f'    v_bfe_u32 v{LC}, v{POS0}, 1, 1', f'    s_mov_b32 s{S_T0}, {(1<<30)+12}', f'    v_mul_lo_u32 v{LC}, v{LC}, s{S_T0}',
          f'    v_mov_b32 v{LC+1}, 0xbfffffff']
    L += repack()
    L += bar()
    def lread(q): return [f'    ds_read_b32 v{areg(q,j)}, v{LA_} offset:{LQ*q+2048*j}' for j in range(7)]
    def lfix(q, j): return [f'    v_add_u32 v{areg(q,j)}, v{LC}, v{areg(q,j)}', f'    v_and_b32 v{areg(q,j)}, v{LC+1}, v{areg(q,j)}']
    L += lread(0) + lread(1)
    for j in range(7): L += lfix(0, j) + rec_load(0, j)
    L += pf_rec(1)
    L += lread(2) + lread(3)
    for q in (1, 2, 3):
        for j in range(7): L += lfix(q, j)
    L1 = [rec_load(1, j) for j in range(7)]; L2 = [rec_load(2, j) for j in range(7)]; L3 = [rec_load(3, j) for j in range(7)]
    a1, a2, a3 = P.get('k2_l1', (2, 1, 4))
    H0 = [hist(0, j) for j in range(7)]
    L += flat(H0[:7 - a1])
    for z in range(a1): L += L1[z] + H0[7 - a1 + z]
    L += bar()
    L += wscan(0)
    L += [f'    v_mov_b32 v{Y+z}, 0' for z in range(4)] + [f'    v_lshl_add_u32 v{AD}, v{POS0}, 3, s{S_ACC}']
    for z in range(4): L.append(f'    ds_write_b128 v{AD}, v[{Y}:{Y+3}] offset:{16384*z}')
    L += [f'    v_add_u32 v{AD}, 65536, v{AD}', f'    v_cmpx_gt_u32 vcc, {(75024-65536)//8}, v{POS0}',
          f'    ds_write_b128 v{AD}, v[{Y}:{Y+3}]', FULL,
          f'    ds_write_b32 v{Y}, v{Y} offset:{SCR}']
    L += flat(L1[a1:a1 + a2])
    L += bar()
    L += flat(interleave(place(0), L1[a1 + a2:]))
    L += bar()
    sched = P.get('sched') or SCHED[P.get('sv', 0)]
    PL = {q: place(q) for q in (1, 2, 3)}
    TL = tail_loads()
    seen = set()
    L += [';@R0']
    for tok in sched.split():
        if tok[0] == 'S': L += [f'    s_setprio {tok[1]}']; continue
        if tok == 'B': L += ['    s_barrier']; continue
        assert tok in '|T' or tok not in seen, tok
        seen.add(tok)
        c = tok[0]
        if c == '|': L += bar(); continue
        if c == 'T': L += stamp(); continue
        q = int(tok[1]); j = int(tok[2]) if len(tok) > 2 else None
        if c == 'g': L += gather(q, j)
        elif c == 'a': assert f'g{q}{j}' in seen; L += acc(q, j)
        elif c == 'r': L += flat(readback(q))
        elif c == 'h': L += hist(q, j)
        elif c == 's': L += wscan(q)
        elif c == 'p': L += PL[q][j]
        elif c == 'l':
            if q == 3: assert f'a0{j}' in seen
            L += rec_load(q, j)
        elif c == 't': assert 'a26' in seen and 'p38' in seen; L += TL[q]
        elif c == 'e':
            e = [X[1] + 3 + 4 * (3 * q + z) for z in range(3)]
            L += [f'    v_lshlrev_b32 v{e[1]}, 1, v{T4}', f'    s_movk_i32 s{S_T0}, {8192*q}', f'    s_movk_i32 s{S_T1}, {2048*q}',
                  f'    buffer_load_dword v{e[0]}, v{e[1]}, s[12:15], s{S_T0} offen',
                  f'    buffer_load_dword v{e[1]}, v{e[1]}, s[12:15], s{S_T0} offen offset:4',
                  f'    buffer_load_ushort v{e[2]}, v{POS0}, s[16:19], s{S_T1} offen']
        elif c == 'M':
            assert 'a26' in seen and 'p38' in seen and all(f'e{z}' in seen for z in range(4))
            for i in range(4):
                e = [X[1] + 3 + 4 * (3 * i + z) for z in range(3)]
                L += [f'    v_mov_b32 v{MR+2*i}, v{e[0]}', f'    v_mov_b32 v{MR+2*i+1}, v{e[1]}', f'    v_mov_b32 v{DR+i}, v{e[2]}']
                seen.add(f't{i}')
        elif c == 'P':
            assert f't{q}' in seen
            g = pstage(q)
            if q == 3: g = g[:2] + [f'    s_cmp_lg_u32 s{S_WAVE}, 0', f'    s_cbranch_scc1 .Lp3f{VAR}'] + g[2:] + [f'.Lp3f{VAR}:']
            L += g
        elif c == 'f': L += pf_rec(q)
        elif c == 'm': L += pf_m(q)
        else: assert 0, tok
    need = [f'{c}{q}{j}' for c in 'ga' for q in range(4) for j in range(7)] + [f'h{q}{j}' for q in (1, 2, 3) for j in range(7)] + \
           [f'p{q}{j}' for q in (1, 2, 3) for j in range(9)] + [f'l{q}{j}' for q in (2, 3) for j in range(7)] + \
           [f'{c}{q}' for c in 'rtP' for q in range(4)] + ['s1', 's2', 's3']
    assert all(n in seen for n in need), [n for n in need if n not in seen]
    L += ['    s_waitcnt vmcnt(0)', '    s_nop 4', ';@R1']
    L += wunpack() + dec_consts()
    L += bar()
    L += tail(front_fast, 'f')
    L += dpp_scan('v_add_u32', SUM)
    L += ['    s_mov_b32 exec_lo, 0', '    s_brev_b32 exec_hi, 1', f'    ds_add_u32 v{FOUR}, v{SUM} offset:{SCR-4}', FULL]
    L += [f'    s_add_u32 s26, s26, s27', '    s_add_u32 s28, s28, s29', '    s_add_u32 s26, s26, s28']
    if LAY: L += ['    s_lshr_b32 s26, s26, 1']
    L += bar()
    L += [f'    ds_read_b32 v{SUM}, v{FOUR} offset:{SCR-4}', f'    v_readfirstlane_b32 s27, v{SUM}',
          '    s_cmp_lg_u32 s26, s27', '    s_cbranch_scc1 .Lslow']
    if prof:
        L += ['    s_waitcnt vmcnt(0)'] + stamp() + ['    s_waitcnt lgkmcnt(0)'] + stamp()
        L += ['    s_waitcnt lgkmcnt(0)', '    s_memtime s[34:35]', f'    v_writelane_b32 v{PV}, s34, 31']
        L += [f'    s_cmp_lg_u32 s{S_WAVE}, 0', '    s_cbranch_scc1 .Lk2_end', '    s_load_dwordx2 s[26:27], s[0:1], 104', '    s_waitcnt lgkmcnt(0)']
        if P.get('hprof'):
            L += ['    s_load_dwordx2 s[4:5], s[0:1], 96', '    s_waitcnt lgkmcnt(0)',
                  '    s_mov_b64 exec, 1', '    v_mov_b32 v1, 0', f'    v_readlane_b32 s7, v{PV}, 0', '    s_not_b32 s6, s7', '    v_mov_b32 v2, s6', '    global_atomic_umax v1, v2, s[4:5] offset:28']
            for z, i in enumerate((5, 17)):
                L += [f'    v_readlane_b32 s6, v{PV}, {i}', f'    v_mov_b32 v2, s6', f'    global_atomic_umax v1, v2, s[4:5] offset:{32+8*z}',
                      f'    s_sub_u32 s6, s6, s7', '    v_mov_b32 v2, s6', f'    global_atomic_add v1, v2, s[4:5] offset:{36+8*z}']
            L += [f'    v_readlane_b32 s6, v{PV}, 31', f'    v_readlane_b32 s7, v{PV}, 30', '    s_sub_u32 s6, s6, s7', '    v_mov_b32 v2, s6', f'    global_atomic_add v1, v2, s[4:5] offset:48', '    s_endpgm']
        L += srd(8, 26, None, 65536, WSB + PROF + 0x10000)
        L += ['    s_lshl_b32 s12, s2, 7', '    s_bfm_b64 exec, 32, 0', f'    buffer_store_dword v{PV}, v{T4}, s[8:11], s12 offen']
    L += ['.Lk2_end:', '    s_endpgm']
    L += ['.Lslow:', '    s_waitcnt vmcnt(0) lgkmcnt(0)', '    s_barrier']
    if P.get('dbgslow'):
        L += ['    s_load_dwordx2 s[26:27], s[0:1], 96', '    s_waitcnt lgkmcnt(0)', '    v_mov_b32 v8, 0', '    v_mov_b32 v9, 1',
              '    s_mov_b64 exec, 1', '    global_atomic_add v8, v9, s[26:27]', FULL]
    L += [f'    v_mov_b32 v{Y+z}, 0' for z in range(4)] + [f'    v_lshlrev_b32 v{AD}, 2, v{T4}']
    for z in range(4): L.append(f'    ds_write_b128 v{AD}, v[{Y}:{Y+3}] offset:{16384*z}')
    L.append(f'    v_add_u32 v{AD}, 65536, v{AD}')
    for z in range(3): L.append(f'    ds_write_b128 v{AD}, v[{Y}:{Y+3}] offset:{16384*z}')
    L += ['    s_load_dwordx4 s[28:31], s[0:1], 56', '    s_load_dwordx2 s[26:27], s[0:1], 72', '    s_load_dwordx2 s[32:33], s[0:1], 80',
          '    s_waitcnt lgkmcnt(0)',
          f'    s_load_dwordx16 s[{W_RBF}:{W_RBF+15}], s[28:29], 0',
          f'    s_load_dwordx16 s[{W_SBF}:{W_SBF+15}], s[30:31], 0',
          f'    s_load_dwordx16 s[{W_SBF+16}:{W_SBF+31}], s[30:31], 64',
          f'    s_load_dwordx8 s[{W_DN}:{W_DN+7}], s[26:27], 0',
          f'    s_load_dwordx8 s[{W_UP}:{W_UP+7}], s[32:33], 0',
          '    s_waitcnt lgkmcnt(0)',
          '    s_load_dwordx2 s[26:27], s[0:1], 104']
    L += repack()
    L += flat(tail_loads()) + pall('s') + wunpack()
    L += ['    s_waitcnt vmcnt(0) lgkmcnt(0)', '    s_barrier']
    LN, UO, T3, G2 = 24, 25, 28, 32
    L += [f'    s_lshl_b32 s{S_T0}, s{S_BK}, 4', f'    s_add_u32 s{S_T0}, s{S_T0}, {WSB+META}',
          f'    s_add_u32 s26, s26, s{S_T0}', '    s_addc_u32 s27, s27, 0',
          f'    s_mov_b32 s40, s{S_WAVE}', f'    v_bfe_u32 v{LN}, v{T4}, 2, 6',
          '.Lsl_c:', '    s_lshl_b32 s42, s40, 12', '    s_load_dwordx4 s[36:39], s[26:27], s42',
          f'    s_mul_i32 s44, s40, {CHB}', '    s_mov_b32 s41, 0', '    s_waitcnt lgkmcnt(0)',
          '.Lsl_q:', '    s_and_b32 s42, s36, 0xffff', '    s_lshr_b32 s43, s36, 16',
          '.Lsl_u:', '    s_cmp_ge_u32 s42, s43', '    s_cbranch_scc1 .Lsl_nq',
          f'    v_add_u32 v{UO}, s42, v{LN}', f'    v_cmpx_gt_u32 vcc, s43, v{UO}',
          f'    v_mul_u32_u24 v{UO}, 12, v{UO}',
          f'    buffer_load_dwordx3 v[{T3}:{T3+2}], v{UO}, s[4:7], s44 offen']
    for h in range(2):
        k = T3 + h
        L += [f'    v_lshrrev_b32 v{G2}, 12, v{k}', f'    v_cmpx_ne_u32 vcc, 0, v{k}',
              f'    buffer_load_dwordx2 v[{G2}:{G2+1}], v{G2}, s[8:11], 0 idxen',
              f'    v_cvt_f32_i32_sdwa v{CP}, sext(v{T3+2}) dst_sel:DWORD dst_unused:UNUSED_PAD src0_sel:WORD_{h}',
              f'    v_mul_f32 v{CP}, 0x{f2u(1.0/32767):08x}, v{CP}',
              f'    v_add_f32 v{CP+1}, v{CP}, v{CP}', f'    v_fma_f32 v{CP+1}, v{CP+1}, v{CP}, -1.0',
              f'    v_and_b32 v{AD}, 0xfff, v{k}', f'    v_lshlrev_b32 v{AD}, 5, v{AD}',
              f'    v_lshlrev_b32 v{MP}, 16, v{G2}', f'    v_and_b32 v{MP+1}, v{MHI}, v{G2}',
              f'    v_lshlrev_b32 v{MP+2}, 16, v{G2+1}', f'    v_and_b32 v{MP+3}, v{MHI}, v{G2+1}']
        for z in range(8):
            L += [f'    v_mul_f32 v{Y+z}, v{CP+(z>>2)}, v{MP+(z&3)}', f'    ds_add_f32 v{AD}, v{Y+z} offset:{4*z}']
    L += [FULL, '    s_waitcnt vmcnt(0) lgkmcnt(0)', '    s_add_u32 s42, s42, 64', '    s_branch .Lsl_u',
          '.Lsl_nq:', '    s_mov_b32 s36, s37', '    s_mov_b32 s37, s38', '    s_mov_b32 s38, s39',
          '    s_add_u32 s41, s41, 1', '    s_cmp_lt_u32 s41, 4', '    s_cbranch_scc1 .Lsl_q',
          '    s_add_u32 s40, s40, 16', '    s_cmp_lt_u32 s40, 500', '    s_cbranch_scc1 .Lsl_c',
          f'    v_lshlrev_b32 v{EA}, 3, v{T4}', f'    v_add_u32 v{EA}, 32, v{EA}',
          '    s_waitcnt vmcnt(0) lgkmcnt(0)', '    s_barrier']
    L += tail(front_slow, 's')
    L += ['    s_endpgm']
    x = P.get('dbgx', 0)
    if x & 1: L = [l for l in L if not ('idxen' in l and 'dwordx2' in l)]
    if x & 2: L = [l for l in L if 'ds_add_u64' not in l]
    if x & 4: L = [l for l in L if not any(o in l for o in ('v_pk_fma_f32 v[14', 'v_pk_fma_f32 v[16', 'v_pk_fma_f32 v[18', 'v_pk_fma_f32 v[20', 'v_mad_u64', 'v_lshl_or_b32 v20', 'v_lshlrev_b32 v15', 'v_lshlrev_b32 v19', 'v_cvt_f32_i32_sdwa', 'v_fma_f32 v9'))]
    if x: L = [l.replace('s_cmp_lg_u32 s26, s27', 's_cmp_lg_u32 s26, s26') for l in L]
    return process(L)
```

```python
from asmlib import *
from k1 import dpp_scan, srd, CHB, META, MAXO, PROF, MAG_Q
import struct, math

def f2u(x): return struct.unpack('<I', struct.pack('<f', x))[0]
def bf16r(x):
    u = f2u(x); u += 0x7fff + ((u >> 16) & 1); u &= 0xffff0000
    return struct.unpack('<f', struct.pack('<I', u))[0]

STG = 13680
CNT, SCR, CS = 0, 6400, 6656
KEYS = CS + 2 * STG
ACC = KEYS + 4 * STG
LISTB = ACC
LQ = 3584 * 4
NMAX = 60
WLO = [(-(-q * (1 << 32) // MAG_Q)) >> 9 for q in range(4)]

def per(q, A, B, C):
    t = ' | '.join((A, B, C)) + ' |'
    return t.replace('Q', str(q)).replace('O', str(q - 1)).replace('N', str(q + 1)).replace('Z', str(q + 2))
SCHED = {}
SCHED[0] = ' '.join([
    per(0, 'r0 g00 g01 hN0 hN1 g02 a00 hN2 hN3 hN4 g03 a01 hN5 hN6', 'sN gQ4 aQ2', 'pN0 lZ0 pN1 lZ1 gQ5 aQ3 pN2 lZ2 pN3 pN4 lZ3 pN5 lZ4 pN6 gQ6 aQ4 lZ5 pN7 lZ6 pN8'),
    per(1, 'rQ gQ0 aO5 gQ1 aO6 hN0 hN1 gQ2 aQ0 hN2 hN3 hN4 gQ3 aQ1 hN5 hN6', 'sN gQ4 aQ2', 'pN0 lZ0 pN1 lZ1 gQ5 aQ3 pN2 lZ2 pN3 pN4 lZ3 pN5 lZ4 pN6 gQ6 aQ4 lZ5 pN7 lZ6 pN8'),
    per(2, 'rQ gQ0 aO5 gQ1 aO6 hN0 hN1 gQ2 aQ0 hN2 hN3 hN4 gQ3 aQ1 hN5 hN6', 'sN gQ4 aQ2', 'pN0 pN1 gQ5 aQ3 pN2 pN3 pN4 pN5 pN6 gQ6 aQ4 pN7 pN8'),
    'r3 g30 a25 g31 a26 g32 a30 t0 g33 a31 g34 a32 t1 g35 a33 g36 a34 t2 a35 t3 a36 P0 P1 P2 P3'])
SCHED[1] = ' '.join([
    per(0, 'r0 g00 hN0 hN1 hN2 hN3 g01 hN4 hN5 hN6 a00 g02', 'sN aQ1 gQ3', 'pN0 lZ0 pN1 lZ1 pN2 lZ2 pN3 lZ3 aQ2 lZ4 pN4 lZ5 pN5 lZ6 pN6 aQ3 pN7 pN8 gQ4'),
    per(1, 'gO5 gO6 rQ aO4 gQ0 aO5 aO6 hN0 hN1 hN2 gQ1 hN3 hN4 hN5 hN6 aQ0 gQ2', 'sN aQ1 gQ3', 'pN0 lZ0 pN1 lZ1 pN2 lZ2 pN3 lZ3 aQ2 lZ4 pN4 lZ5 pN5 lZ6 pN6 aQ3 pN7 pN8 gQ4'),
    per(2, 'gO5 gO6 rQ aO4 gQ0 aO5 aO6 hN0 hN1 hN2 hN3 hN4 hN5 hN6 gQ1', 'sN aQ0 gQ2', 'gQ3 pN0 pN1 pN2 pN3 aQ1 gQ4 pN4 aQ2 pN5 pN6 pN7 pN8 gQ5'),
    'a23 g26 r3 a24 g30 a25 g31 a26 t0 t1 t2 t3 g32 a30 P0 g33 a31 P1 g34 a32 P2 g35 a33 P3 g36 a34 a35 a36'])
FIN = 'g25 g26 r3 a24 g30 a25 a26 t0 t1 t2 t3 g31 a30 g32 P0 a31 g33 P1 a32 g34 P2 a33 g35 P3 a34 g36 a35 a36'
P2 = per(2, 'gO5 gO6 rQ aO4 gQ0 aO5 aO6 hN0 hN1 hN2 hN3 hN4 hN5 hN6 gQ1', 'sN aQ0 gQ2', 'pN0 pN1 pN2 gQ3 pN3 aQ1 pN4 aQ2 pN5 gQ4 pN6 pN7 pN8 aQ3')
SCHED[2] = ' '.join([
    per(0, 'r0 g00 lZ0 hN0 hN1 hN2 hN3 g01 lZ1 hN4 hN5 hN6 a00', 'gQ2 lZ2 sN aQ1', 'gQ3 lZ3 pN0 pN1 pN2 pN3 aQ2 gQ4 lZ4 pN4 pN5 pN6 aQ3 pN7 pN8 lZ5 lZ6'),
    per(1, 'gO5 gO6 rQ aO4 lZ0 gQ0 aO5 aO6 lZ1 hN0 hN1 hN2 gQ1 lZ2 hN3 hN4 hN5 hN6 aQ0', 'gQ2 lZ3 sN aQ1', 'gQ3 lZ4 pN0 pN1 pN2 pN3 aQ2 gQ4 lZ5 pN4 pN5 pN6 aQ3 pN7 pN8 lZ6'),
    P2, FIN])
SCHED[3] = ' '.join([
    per(0, 'r0 g00 hN0 hN1 hN2 hN3 g01 hN4 hN5 hN6 a00', 'gQ2 sN aQ1', 'gQ3 pN0 pN1 aQ2 lZ0 pN2 lZ1 pN3 lZ2 pN4 lZ3 pN5 lZ4 pN6 lZ5 pN7 lZ6 pN8 gQ4 aQ3'),
    per(1, 'gO5 gO6 rQ aO4 gQ0 aO5 aO6 hN0 hN1 hN2 gQ1 hN3 hN4 hN5 hN6 aQ0', 'gQ2 sN aQ1', 'gQ3 pN0 pN1 aQ2 lZ0 pN2 lZ1 pN3 lZ2 pN4 lZ3 pN5 lZ4 pN6 lZ5 pN7 lZ6 pN8 gQ4 aQ3'),
    P2, FIN])
SCHED[4] = SCHED[3].replace(FIN, 'g25 g26 r3 a24 T g30 a25 a26 T t0 t1 t2 t3 g31 a30 T g32 P0 a31 T g33 P1 a32 T g34 P2 a33 T g35 P3 a34 T g36 a35 T a36')
SCHED[5] = SCHED[3].replace(FIN, 'g25 g26 r3 a24 T g30 a25 a26 T g31 a30 T g32 a31 T g33 a32 T g34 a33 T g35 a34 T g36 a35 T a36 t0 t1 t2 t3 P0 P1 P2 P3')
SCHED[6] = SCHED[3].replace(FIN, 'g25 g26 r3 a24 T g30 a25 g31 a26 T g32 a30 T g33 a31 T g34 a32 T g35 a33 T g36 a34 T a35 T a36 t0 t1 t2 t3 P0 P1 P2 P3')
def autoprio(sched, mode):
    out = []
    for iv in sched.split('|'):
        toks = iv.split()
        gs = [k for k, t in enumerate(toks) if t[0] == 'g' and t[2] != '6']
        n = len(gs); o = ['S3']; cur = 3; c = 0
        for k, t in enumerate(toks):
            o.append(t)
            if k in gs:
                c += 1
                p = max(0, 3 - (c * 3 + n - 1) // n) if n > 3 else 3 - c
                if p != cur: o.append(f'S{p}'); cur = p
        out.append(' '.join(o))
    return ' | '.join(out)
SCHED[7] = autoprio(SCHED[4], 0)
SCHED[8] = autoprio(SCHED[3], 0).split('|')
SCHED[8] = ' | '.join(SCHED[8][:-1]) + ' | S3 g25 S2 g26 r3 a24 T g30 S1 a25 a26 T t0 t1 t2 t3 g31 B S3 a30 T g32 S2 P0 a31 T g33 B S3 P1 a32 T g34 S2 P2 a33 T g35 S1 P3 a34 T g36 a35 T a36'
SCHED[9] = autoprio(SCHED[2], 0)
FIN2 = 'g25 g26 r3 a24 g30 a25 a26 M0 P0 g31 P1 a30 g32 P2 a31 g33 P3 a32 g34 a33 g35 a34 g36 a35 a36'
HN = 'hN0 hN1 hN2 hN3 hN4 hN5 hN6'
A0 = 'r0 g00 ' + HN; A1 = 'gO5 gO6 rQ aO4 gQ0 aO5 aO6 ' + HN
B1 = 'gQ1 sN aQ0'
C1 = 'gQ2 pN0 pN1 pN2 aQ1 gQ3 pN3 pN4 pN5 aQ2 pN6 pN7 gQ4 pN8 aQ3'
A0L = 'r0 g00 lZ0 hN0 lZ1 hN1 lZ2 hN2 lZ3 hN3 lZ4 hN4 lZ5 hN5 lZ6 hN6 E'
A1L = 'gO5 gO6 rQ aO4 gQ0 aO5 aO6 lZ0 hN0 lZ1 hN1 lZ2 hN2 lZ3 hN3 lZ4 hN4 lZ5 hN5 lZ6 hN6 E'
C1a = 'gQ2 pN0 pN1 aQ1 lZ0 pN2 lZ1 pN3 lZ2 pN4 lZ3 lZ4 pN5 lZ5 lZ6 E gQ3 aQ2 pN6 pN7 gQ4 pN8 aQ3'
C1b = 'gQ2 pN0 pN1 aQ1 gQ3 pN2 pN3 aQ2 gQ4 aQ3 lZ0 pN4 lZ1 pN5 lZ2 pN6 lZ3 pN7 lZ4 pN8 lZ5 lZ6 E'
def mk(a0, a1, b, c):
    return ' '.join([per(0, a0, b, c).replace('E', ''), per(1, a1, b, c).replace('E', 'e0 e1 e2 e3'), per(2, A1, B1, C1), FIN2])
SCHED[10] = mk(A0L, A1L, B1, C1)
SCHED[11] = mk(A0, A1, B1, C1a)
SCHED[12] = mk(A0, A1, B1, C1b)
for k in (10, 11, 12): SCHED[k + 10] = autoprio(SCHED[k], 0)

def gen_k2(P, name):
    svs = P.get('svs') or [P.get('sv', 0)]
    progs = []
    for v, sv in enumerate(svs):
        Q = dict(P); Q['sv'] = sv
        progs.append(gen_k2v(Q, name, v))
    def cut(pr):
        a = pr.index(';@R0'); b = pr.index(';@R1')
        return pr[:a], pr[a + 1:b], pr[b + 1:]
    pro, _, tl = cut(progs[0])
    V = len(svs)
    out = list(pro)
    if V > 1:
        sel = P.get('vsel', 3)
        out += [f'    s_lshr_b32 s100, s2, {sel}']
        if V == 3: out += ['    s_mul_i32 s101, s100, 86', '    s_lshr_b32 s101, s101, 8', '    s_mul_i32 s101, s101, 3', '    s_sub_u32 s100, s100, s101']
        else: out += [f'    s_and_b32 s100, s100, {V-1}']
        for v in range(1, V): out += [f'    s_cmp_eq_u32 s100, {v}', f'    s_cbranch_scc1 .Lvar{v}']
    for v in range(V):
        assert cut(progs[v])[0] == pro
        out += [f'.Lvar{v}:'] + cut(progs[v])[1]
        if v < V - 1: out += ['    s_branch .Lvend']
    out += ['.Lvend:'] + tl
    return out

def gen_k2v(P, name, VAR):
    LD = P.get('k2_ld', 'nt'); prof = P.get('prof', 0); WSB = P.get('wsb', 0)
    OST = P.get('k2_st', '')
    POS0, T4, KB, FOUR, MHI, NH, PV = 0, 1, 2, 3, 4, 5, 7
    LAY = P.get('lay', 0); PD = {0: 0, 1: 1024, 2: 64}[LAY]; PQ = 6 if LAY == 2 else POS0
    CP, MP, Y, AD, TT = 8, 10, 14, 22, 23
    RING = 24; NR = 3
    SP = [36, 37, 38, 39, 40, 41, 42, 43]
    X = [44, 72, 100, 44]
    S_WAVE, S_BK, S_TOT, S_MG, S_P21, S_ACC, S_T0, S_T1, S_T2 = 24, 25, 26, 30, 32, 33, 100, 101, 3
    W_RBF, W_SBF, W_DN, W_UP = 36, 52, 84, 92
    pc = [0]
    def stamp():
        if not prof: return []
        L = []
        if pc[0] > 0: L.append(f'    v_writelane_b32 v{PV}, s34, {pc[0]-1}')
        pc[0] += 1
        return L + ['    s_memrealtime s[34:35]']
    def bar(st=True): return ['    s_waitcnt lgkmcnt(0)', '    s_barrier'] + (stamp() if st else [])
    FULL = '    s_mov_b64 exec, -1'
    def tri(q, j): return X[q] + 4 * j
    def areg(q, j): return tri(q, j) + (3 if q == 3 else 0)

    def wloads():
        return ['    s_load_dwordx8 s[4:11], s[0:1], 56', '    s_waitcnt lgkmcnt(0)'] + wloads2()
    def wloads2():
        return [f'    s_load_dwordx16 s[{W_RBF}:{W_RBF+15}], s[4:5], 0',
                f'    s_load_dwordx16 s[{W_SBF}:{W_SBF+15}], s[6:7], 0',
                f'    s_load_dwordx16 s[{W_SBF+16}:{W_SBF+31}], s[6:7], 64',
                f'    s_load_dwordx8 s[{W_DN}:{W_DN+7}], s[8:9], 0',
                f'    s_load_dwordx8 s[{W_UP}:{W_UP+7}], s[10:11], 0']
    def wreg(o, rp):
        if o < 8:
            l, d = o >> 2, o & 3
            return W_SBF + ((4 * rp + l) * 2 + (d >> 1)) + (4 if d & 1 else 0)
        d = o - 8
        return W_RBF + ((2 * rp) * 2 + (d >> 1)) + (2 if d & 1 else 0)
    def repack():
        L = []
        for rp in range(4):
            for o in (0, 2, 4, 6, 8, 10):
                a, b = wreg(o, rp), wreg(o + 1, rp)
                L += [f'    s_pack_ll_b32_b16 s{S_T0}, s{a}, s{b}', f'    s_pack_hh_b32_b16 s{b}, s{a}, s{b}', f'    s_mov_b32 s{a}, s{S_T0}']
        return L

    def rec_load(q, j):
        t = tri(q, j)
        return [f'    buffer_load_dwordx3 v[{t}:{t+2}], v{areg(q,j)}, s[4:7], 0 offen {LD}']
    PFA = [75, 79, 83, 87]; PFM = 91; PFI = 95; DUM = 6
    PFLD = P.get('pf_ld', '')
    def pf_info():
        return [f'    s_lshl_b32 s{S_T0}, s{S_WAVE}, 5', f'    s_lshr_b32 s{S_T1}, s2, 3', f'    s_add_u32 s{S_T0}, s{S_T0}, s{S_T1}',
                f'    s_mul_i32 s{S_T2}, s{S_T0}, {CHB}', f'    s_lshl_b32 s{S_T0}, s{S_T0}, 12',
                f'    s_and_b32 s{S_T1}, s2, 7', f'    s_lshl_b32 s{S_T1}, s{S_T1}, 9', f'    s_add_u32 s{S_T0}, s{S_T0}, s{S_T1}',
                f'    v_and_b32 v{PFI}, 3, v0', f'    v_bfe_u32 v{PFM}, v0, 2, 1', f'    v_mul_u32_u24 v{PFM}, 124, v{PFM}',
                f'    v_add_lshl_u32 v{PFI}, v{PFI}, v{PFM}, 2',
                f'    buffer_load_dword v{PFI}, v{PFI}, s[12:15], s{S_T0} offen',
                f'    v_and_b32 v{PFA[3]}, 63, v0', f'    v_lshlrev_b32 v{PFA[3]}, 7, v{PFA[3]}',
                f'    s_lshr_b32 s{S_T1}, s2, 3', f'    s_mul_i32 s{S_T1}, s{S_T1}, 6400', f'    s_mul_i32 s{S_T0}, s{S_WAVE}, 400',
                f'    s_add_u32 s{S_T0}, s{S_T0}, s{S_T1}',
                f'    v_lshrrev_b32 v{PFM}, 3, v{PFA[3]}', f'    v_cmp_gt_u32 vcc, 400, v{PFM}', f'    v_add_u32 v{PFM}, s{S_T0}, v{PFM}',
                f'    v_mov_b32 v{PFA[0]}, 0x1000000', f'    v_cndmask_b32 v{PFM}, v{PFA[0]}, v{PFM}, vcc']
    def pf_addr():
        L = []
        for q in range(4):
            L += [f'    v_readlane_b32 s{S_T0}, v{PFI}, {q}', f'    v_readlane_b32 s{S_T1}, v{PFI}, {4+q}',
                  f'    s_and_b32 s{S_T0}, s{S_T0}, 0xffff', f'    s_lshr_b32 s{S_T1}, s{S_T1}, 16',
                  f'    s_mul_i32 s{S_T0}, s{S_T0}, 12', f'    s_mul_i32 s{S_T1}, s{S_T1}, 12',
                  f'    s_and_b32 s{S_T0}, s{S_T0}, -128', f'    s_sub_u32 s{S_T1}, s{S_T1}, s{S_T0}',
                  f'    s_add_u32 s{S_T0}, s{S_T0}, s{S_T2}',
                  f'    v_cmp_gt_u32 vcc, s{S_T1}, v{PFA[3]}', f'    v_add_u32 v{PFA[q]}, s{S_T0}, v{PFA[3]}',
                  f'    v_cndmask_b32 v{PFA[q]}, -16, v{PFA[q]}, vcc']
            if q == 0: L += pf_rec(0)
        return L
    def pf_rec(q):
        if not P.get('pf', 0) & 1: return []
        return [f'    buffer_load_dword v{DUM}, v{PFA[q]}, s[4:7], 0 offen {PFLD} ; nodep']
    def pf_m(q):
        if not P.get('pf', 0) & 2: return []
        return [f'    buffer_load_dword v{DUM}, v{PFM}, s[8:11], 0 idxen ; nodep', f'    v_add_u32 v{PFM}, 200000, v{PFM}']
    def coff(q): return CNT + 1600 * q - 4 * WLO[q]
    def hist(q, j):
        t = tri(q, j); a, b = SP[6], SP[7]
        return [f'    v_lshrrev_b32 v{a}, 19, v{t}', f'    v_lshrrev_b32 v{b}, 19, v{t+1}',
                f'    v_and_b32 v{a}, -4, v{a}', f'    v_and_b32 v{b}, -4, v{b}',
                f'    v_cmpx_ne_u32 vcc, 0, v{t}', f'    ds_add_u32 v{a}, v{FOUR} offset:{coff(q)}',
                f'    v_cmpx_ne_u32 vcc, 0, v{t+1}', f'    ds_add_u32 v{b}, v{FOUR} offset:{coff(q)}', FULL]
    def place(q, d=2):
        G = []
        for s in range(7 + d):
            g = []
            if s >= d:
                t = tri(q, s - d); a, b = SP[2 * ((s - d) % 3)], SP[2 * ((s - d) % 3) + 1]
                g += [f'    v_cmpx_ne_u32 vcc, 0, v{t}', f'    ds_write_b32 v{a}, v{t} offset:{KEYS}',
                      f'    v_lshrrev_b32 v{a}, 1, v{a}', f'    ds_write_b16 v{a}, v{t+2} offset:{CS}',
                      f'    v_cmpx_ne_u32 vcc, 0, v{t+1}', f'    ds_write_b32 v{b}, v{t+1} offset:{KEYS}',
                      f'    v_lshrrev_b32 v{b}, 1, v{b}', f'    ds_write_b16_d16_hi v{b}, v{t+2} offset:{CS}', FULL]
            if s < 7:
                t = tri(q, s); a, b = SP[2 * (s % 3)], SP[2 * (s % 3) + 1]
                g += [f'    v_lshrrev_b32 v{a}, 19, v{t}', f'    v_lshrrev_b32 v{b}, 19, v{t+1}',
                      f'    v_and_b32 v{a}, -4, v{a}', f'    v_and_b32 v{b}, -4, v{b}',
                      f'    v_cmpx_ne_u32 vcc, 0, v{t}', f'    ds_add_rtn_u32 v{a}, v{a}, v{FOUR} offset:{coff(q)}',
                      f'    v_cmpx_ne_u32 vcc, 0, v{t+1}', f'    ds_add_rtn_u32 v{b}, v{b}, v{FOUR} offset:{coff(q)}', FULL]
            G.append(g)
        return G
    def wscan(q):
        c = Y; a, s, o = AD, TT, CP
        wv = P.get('scanwave', [0, 5, 10, 15])[q]
        L = [f'    s_cmp_lg_u32 s{S_WAVE}, {wv}', f'    s_cbranch_scc1 .Lsc{q}_{VAR if q else 0}',
             f'    v_and_b32 v{a}, 0xff, v{T4}', f'    v_lshlrev_b32 v{a}, 3, v{a}', '    s_bfm_b64 exec, 50, 0',
             f'    ds_read_b128 v[{c}:{c+3}], v{a} offset:{CNT+1600*q}',
             f'    ds_read_b128 v[{c+4}:{c+7}], v{a} offset:{CNT+1600*q+16}']
        for i in range(1, 8): L.append(f'    v_add_u32 v{c+i}, v{c+i}, v{c+i-1}')
        L.append(f'    v_mov_b32 v{s}, v{c+7}')
        L += dpp_scan('v_add_u32', s)
        L.append(f'    v_sub_u32 v{s}, v{s}, v{c+7}')
        for i in range(7, 0, -1): L.append(f'    v_add_u32 v{c+i}, v{s}, v{c+i-1}')
        L += [f'    v_mov_b32 v{c}, v{s}',
              f'    ds_write_b128 v{a}, v[{c}:{c+3}] offset:{CNT+1600*q}',
              f'    ds_write_b128 v{a}, v[{c+4}:{c+7}] offset:{CNT+1600*q+16}',
              FULL, '    s_waitcnt lgkmcnt(0)', f'.Lsc{q}_{VAR if q else 0}:']
        return L
    def readback(q):
        G = [[f'    ds_read_b32 v{SP[6]}, v{FOUR} offset:{CNT+1600*q+399*4-4}']]
        if LAY: G = [[f'    ds_read_b32 v{SP[7]}, v{FOUR} offset:{CNT+1600*q+399*4-4}']]
        for j in range(7):
            t = tri(q, j)
            if LAY:
                G.append([f'    ds_read2st64_b32 v[{t}:{t+1}], v{KB} offset0:{32*j} offset1:{32*j+PD//64}',
                          f'    ds_read_u16 v{t+2}, v{PQ} offset:{CS+4096*j}', f'    ds_read_u16 v{SP[j]}, v{PQ} offset:{CS+4096*j+2*PD}'])
            else:
                G.append([f'    ds_read_b64 v[{t}:{t+1}], v{KB} offset:{8192*j}', f'    ds_read_b32 v{t+2}, v{T4} offset:{CS+4096*j}'])
        if LAY:
            G.append([f'    v_readfirstlane_b32 s{S_TOT+q}, v{SP[7]}', f'    s_lshr_b32 s{S_TOT+q}, s{S_TOT+q}, 1'])
            G.append([f'    v_lshl_or_b32 v{tri(q,j)+2}, v{SP[j]}, 16, v{tri(q,j)+2}' for j in range(7)])
        else: G.append([f'    v_readfirstlane_b32 s{S_TOT+q}, v{SP[6]}', f'    s_lshr_b32 s{S_TOT+q}, s{S_TOT+q}, 2'])
        return G
    gi = [0]; gmap = {}
    def gather(q, j):
        r = RING + 4 * (gi[0] % NR); gi[0] += 1
        assert r not in gmap.values(), (q, j)
        gmap[(q, j)] = r
        t = tri(q, j)
        if LAY:
            return [f'    s_sub_u32 s{S_T0}, s{S_TOT+q}, {4096*j}', f'    s_sub_u32 s{S_T1}, s{S_TOT+q}, {4096*j+2*PD}',
                f'    v_lshrrev_b32 v{r}, 12, v{t}', f'    v_lshrrev_b32 v{r+2}, 12, v{t+1}',
                f'    v_cmpx_gt_i32 vcc, s{S_T0}, v{PQ}',
                f'    buffer_load_dwordx2 v[{r}:{r+1}], v{r}, s[8:11], 0 idxen',
                f'    v_cmpx_gt_i32 vcc, s{S_T1}, v{PQ}',
                f'    buffer_load_dwordx2 v[{r+2}:{r+3}], v{r+2}, s[8:11], 0 idxen', FULL]
        return [f'    s_sub_u32 s{S_T0}, s{S_TOT+q}, {2048*j}',
                f'    v_lshrrev_b32 v{r}, 12, v{t}', f'    v_lshrrev_b32 v{r+2}, 12, v{t+1}',
                f'    v_cmpx_gt_i32 vcc, s{S_T0}, v{POS0}',
                f'    buffer_load_dwordx2 v[{r}:{r+1}], v{r}, s[8:11], 0 idxen',
                f'    buffer_load_dwordx2 v[{r+2}:{r+3}], v{r+2}, s[8:11], 0 idxen', FULL]
    def acc1(k, cc, h, g):
        mg = f's[{S_MG}:{S_MG+1}]'
        return [f'    v_cvt_f32_i32_sdwa v{CP}, sext(v{cc}) dst_sel:DWORD dst_unused:UNUSED_PAD src0_sel:WORD_{h}',
                f'    v_and_b32 v{AD}, 0xfff, v{k}',
                f'    v_fma_f32 v{CP+1}, v{CP}, v{CP}, v{NH}',
                f'    v_mad_u32_u24 v{AD}, v{AD}, 24, s{S_ACC}',
                f'    v_lshlrev_b32 v{MP}, 16, v{g}', f'    v_and_b32 v{MP+1}, v{MHI}, v{g}',
                f'    v_lshlrev_b32 v{MP+2}, 16, v{g+1}', f'    v_and_b32 v{MP+3}, v{MHI}, v{g+1}',
                f'    v_pk_fma_f32 v[{Y}:{Y+1}], v[{CP}:{CP+1}], v[{MP}:{MP+1}], {mg} op_sel_hi:[1,0,1]',
                f'    v_pk_fma_f32 v[{Y+2}:{Y+3}], v[{CP}:{CP+1}], v[{MP}:{MP+1}], {mg} op_sel:[0,1,0]',
                f'    v_pk_fma_f32 v[{Y+4}:{Y+5}], v[{CP}:{CP+1}], v[{MP+2}:{MP+3}], {mg} op_sel_hi:[1,0,1]',
                f'    v_pk_fma_f32 v[{Y+6}:{Y+7}], v[{CP}:{CP+1}], v[{MP+2}:{MP+3}], {mg} op_sel:[0,1,0]',
                f'    v_lshlrev_b32 v{Y+1}, 10, v{Y+1}',
                f'    v_lshlrev_b32 v{Y+5}, 10, v{Y+5}',
                f'    v_mad_u64_u32 v[{Y}:{Y+1}], vcc, v{Y+2}, s{S_P21}, v[{Y}:{Y+1}]',
                f'    v_lshl_or_b32 v{Y+6}, v{Y+6}, 9, 1',
                f'    ds_add_u64 v{AD}, v[{Y}:{Y+1}]',
                f'    v_mad_u64_u32 v[{Y+4}:{Y+5}], vcc, v{Y+3}, s{S_P21}, v[{Y+4}:{Y+5}]',
                f'    ds_add_u64 v{AD}, v[{Y+6}:{Y+7}] offset:16',
                f'    ds_add_u64 v{AD}, v[{Y+4}:{Y+5}] offset:8']
    def acc(q, j):
        t = tri(q, j); r = gmap.pop((q, j))
        o0, o1 = (4096 * j, 4096 * j + 2 * PD) if LAY else (2048 * j, 2048 * j + 1)
        return ([f'    s_sub_u32 s{S_T0}, s{S_TOT+q}, {o0}', f'    s_sub_u32 s{S_T1}, s{S_TOT+q}, {o1}',
                 f'    v_cmpx_gt_i32 vcc, s{S_T0}, v{PQ}'] + acc1(t, t + 2, 0, r) +
                [f'    v_cmpx_gt_i32 vcc, s{S_T1}, v{PQ}'] + acc1(t + 1, t + 2, 1, r + 2) + [FULL])

    PR, MR, DR = 72, 120, 36
    def tail_loads():
        G = []
        for i in range(4):
            G.append([f'    v_lshlrev_b32 v{MR+2*i}, 1, v{T4}', f'    s_movk_i32 s{S_T0}, {8192*i}', f'    s_movk_i32 s{S_T1}, {2048*i}',
                      f'    buffer_load_dwordx2 v[{MR+2*i}:{MR+2*i+1}], v{MR+2*i}, s[12:15], s{S_T0} offen',
                      f'    buffer_load_ushort v{DR+i}, v{POS0}, s[16:19], s{S_T1} offen'])
        return G
    SQ = math.sqrt(10.0 * math.log2(math.e))
    def pstage(i):
        d = DR + i; t = Y; pk = MP
        G = [[f'    v_lshlrev_b32 v{d}, 16, v{d}', f'    v_mul_f32 v{d}, 0x{f2u(SQ):08x}, v{d}']]
        g = G[0]
        for r in range(8): g.append(f'    v_add_f32 v{t+r}, 0x{f2u(-bf16r(r/7.0)*SQ):08x}, v{d}' if r else f'    v_mov_b32 v{t}, v{d}')
        for r in range(8): g.append(f'    v_mul_f32 v{t+r}, v{t+r}, v{t+r}')
        for r in range(8): g.append(f'    v_exp_f32_e64 v{t+r}, -v{t+r}')
        for rp in range(4): g.append(f'    v_cvt_pk_bf16_f32 v{pk+rp}, v{t+2*rp}, v{t+2*rp+1}')
        for rp in range(4):
            for o in range(12):
                x = PR + 12 * i + o
                g.append(f'    v_dot2_f32_bf16 v{x}, v{pk+rp}, s{wreg(o,rp)}, ' + ('0' if rp == 0 else f'v{x}'))
        return g
    WD, WU = 52, 68
    def wunpack():
        L = []
        for z in range(8):
            L += [f'    s_lshl_b32 s{WD+2*z}, s{W_DN+z}, 16', f'    s_and_b32 s{WD+2*z+1}, s{W_DN+z}, 0xffff0000',
                  f'    s_lshl_b32 s{WU+2*z}, s{W_UP+z}, 16', f'    s_and_b32 s{WU+2*z+1}, s{W_UP+z}, 0xffff0000']
        return L
    AR, BR, WR, KC, NB, SUM, EA = 8, 16, 24, 44, 52, 40, 41
    def dec_consts():
        return [f'    s_lshr_b32 s{S_T0}, s{S_MG}, 23', f'    s_lshr_b32 s{S_T1}, s{S_MG+1}, 23',
                f'    s_sub_u32 s{S_T2}, s{S_T0}, 23', f'    s_lshl_b32 s{S_T2}, s{S_T2}, 23',
                f'    v_mov_b32 v{KC}, s{S_T2}',
                f'    v_mul_f32 v{KC}, 0x{f2u(1.0/32767):08x}, v{KC}',
                f'    v_mul_f32 v{KC+1}, 0x{f2u(32768.0/32767):08x}, v{KC}',
                f'    s_lshl_b32 s{S_T0}, s{S_T0}, 2', f'    s_lshl_b32 s{S_T1}, s{S_T1}, 2',
                f'    s_add_u32 s{S_T0}, s{S_T0}, 16384', f'    s_add_u32 s{S_T1}, s{S_T1}, 16384',
                f'    v_cvt_f32_u32 v{NB}, s{S_T0}', f'    v_cvt_f32_u32 v{NB+1}, s{S_T1}',
                f'    v_mul_f32 v{KC+2}, 0x{f2u(-16384.0):08x}, v{KC}',
                f'    v_mul_f32_e64 v{KC+3}, -v{NB}, v{KC}',
                f'    v_mul_f32_e64 v{KC+4}, -v{NB}, v{KC+1}',
                f'    v_mul_f32_e64 v{KC+5}, -v{NB+1}, v{KC+1}',
                f'    v_mul_f32 v{KC+6}, 0x{f2u(-16384.0):08x}, v{KC+1}',
                f'    v_mov_b32 v{SUM}, 0',
                f'    v_mul_u32_u24 v{EA}, 6, v{T4}', f'    v_add_u32 v{EA}, {ACC+24}, v{EA}']
    def front_fast(i):
        w = WR; n = WR + 6; M21 = 0x1fffff
        L = []
        if i == 2: L.append(f'    v_add_u32 v{EA}, {2*24576}, v{EA}')
        o = 24576 * (i & 1)
        L += [f'    ds_read_b64 v[{w+4}:{w+5}], v{EA} offset:{o+16}', f'    ds_read_b64 v[{w}:{w+1}], v{EA} offset:{o}',
              f'    ds_read_b64 v[{w+2}:{w+3}], v{EA} offset:{o+8}',
              f'    v_and_b32 v{n}, 0x1ff, v{w+4}',
              f'    v_add_u32 v{SUM}, v{SUM}, v{n}',
              f'    v_cmp_lt_u32 vcc, {NMAX}, v{n}',
              f'    v_cvt_f32_u32 v{n}, v{n}',
              f'    v_lshrrev_b32 v{AR+3}, 9, v{w+4}', f'    v_and_b32 v{AR+7}, 0x7fffff, v{w+5}',
              f'    s_cbranch_vccz .Lnp{i}', f'    v_add_u32 v{SUM}, 0x100000, v{SUM}', f'.Lnp{i}:']
        for z in range(5): L.append(f'    v_mul_f32 v{NB+z}, v{n}, v{KC+2+z}')
        L += [f'    v_and_b32 v{AR}, {M21}, v{w}', f'    v_alignbit_b32 v{AR+1}, v{w+1}, v{w}, 21', f'    v_lshrrev_b32 v{AR+4}, 10, v{w+1}',
              f'    v_and_b32 v{AR+2}, {M21}, v{w+2}', f'    v_alignbit_b32 v{AR+5}, v{w+3}, v{w+2}, 21', f'    v_lshrrev_b32 v{AR+6}, 10, v{w+3}',
              f'    v_and_b32 v{AR+1}, {M21}, v{AR+1}', f'    v_and_b32 v{AR+5}, {M21}, v{AR+5}']
        for z in range(8): L.append(f'    v_cvt_f32_u32 v{AR+z}, v{AR+z}')
        comb = [0, 1, 0, 0, 2, 2, 3, 4]
        for z in range(8): L.append(f'    v_fma_f32 v{AR+z}, v{AR+z}, v{KC+(z>>2)}, v{NB+comb[z]}')
        return L
    def front_slow(i):
        L = []
        if i == 2: L.append(f'    v_add_u32 v{EA}, 65536, v{EA}')
        o = 32768 * (i & 1)
        return L + [f'    ds_read_b128 v[{AR}:{AR+3}], v{EA} offset:{o}', f'    ds_read_b128 v[{AR+4}:{AR+7}], v{EA} offset:{o+16}']
    def bsel(k): return ('op_sel:[1,0,0]' if k & 1 else 'op_sel_hi:[0,1,1]')
    def back(i):
        L = []; p = PR + 12 * i; ag = WR; up = WR + 4; m = MR + 2 * i
        for k in range(4):
            for l in range(2):
                for dp in range(2):
                    b = BR + 4 * l + 2 * dp; a = AR + 4 * l + (k & 2); w = WD + 4 * k + 2 * dp
                    if k == 0: L.append(f'    v_pk_mul_f32 v[{b}:{b+1}], v[{a}:{a+1}], s[{w}:{w+1}] op_sel_hi:[0,1]')
                    else: L.append(f'    v_pk_fma_f32 v[{b}:{b+1}], v[{a}:{a+1}], s[{w}:{w+1}], v[{b}:{b+1}] {bsel(k)}')
        for d in range(4): L.append(f'    v_mul_f32 v{ag+d}, v{p+d}, v{BR+d}')
        for d in range(4): L.append(f'    v_fmac_f32 v{ag+d}, v{p+4+d}, v{BR+4+d}')
        L += [f'    v_lshlrev_b32 v{AR}, 16, v{m}', f'    v_and_b32 v{AR+1}, v{MHI}, v{m}',
              f'    v_lshlrev_b32 v{AR+2}, 16, v{m+1}', f'    v_and_b32 v{AR+3}, v{MHI}, v{m+1}']
        for k in range(4):
            for dp in range(2):
                b = up + 2 * dp; a = ag + (k & 2); w = WU + 4 * k + 2 * dp
                if k == 0: L.append(f'    v_pk_mul_f32 v[{b}:{b+1}], v[{a}:{a+1}], s[{w}:{w+1}] op_sel_hi:[0,1]')
                else: L.append(f'    v_pk_fma_f32 v[{b}:{b+1}], v[{a}:{a+1}], s[{w}:{w+1}], v[{b}:{b+1}] {bsel(k)}')
        for d in range(4): L.append(f'    v_fmac_f32 v{AR+d}, v{up+d}, v{p+8+d}')
        L += [f'    v_cvt_pk_bf16_f32 v{m}, v{AR}, v{AR+1}', f'    v_cvt_pk_bf16_f32 v{m+1}, v{AR+2}, v{AR+3}',
              f'    v_lshlrev_b32 v{BR}, 1, v{T4}', f'    s_movk_i32 s{S_T0}, {8192*i}',
              f'    buffer_store_dwordx2 v[{m}:{m+1}], v{BR}, s[20:23], s{S_T0} offen {OST}']
        return L
    def tail(front, tag):
        L = []
        for i in range(3): L += front(i) + back(i)
        L += [f'    s_cmp_lg_u32 s{S_WAVE}, 0', f'    s_cbranch_scc1 .Lt3{tag}', '    s_bfm_b64 exec, 53, 0']
        L += front(3) + back(3) + [FULL, '    s_waitcnt lgkmcnt(0)', f'.Lt3{tag}:']
        return L
    def pall(tag):
        L = []
        for i in range(3): L += pstage(i)
        L += [f'    s_waitcnt vmcnt(0)', f'    s_cmp_lg_u32 s{S_WAVE}, 0', f'    s_cbranch_scc1 .Lp3{tag}'] + pstage(3) + [f'.Lp3{tag}:']
        return L

    L = [name + ':', '    s_cmp_ge_u32 s2, 256', '    s_cbranch_scc1 .Lk2_end',
         '    s_load_dwordx2 s[26:27], s[0:1], 104', '    s_load_dwordx2 s[28:29], s[0:1], 0',
         '    s_load_dwordx2 s[30:31], s[0:1], 24', '    s_load_dwordx2 s[32:33], s[0:1], 88',
         '    s_load_dwordx8 s[4:11], s[0:1], 56']
    if prof: L += ['    s_memtime s[34:35]', f'    v_writelane_b32 v{PV}, s34, 30']
    L += stamp()
    E0, MX, CB, T16, U, S, SI = 8, 12, 16, 17, 18, 19, 20
    L += [f'    v_lshrrev_b32 v{E0}, 6, v0', f'    v_lshlrev_b32 v{T16}, 4, v0', f'    v_and_b32 v{CB}, 0x1ff, v0',
          f'    v_readfirstlane_b32 s{S_WAVE}, v{E0}',
          f'    v_lshlrev_b32 v{E0}, 12, v{CB}',
          f'    s_and_b32 s{S_BK}, s2, 7', f'    s_lshl_b32 s{S_BK}, s{S_BK}, 5', f'    s_lshr_b32 s{S_T0}, s2, 3', f'    s_add_u32 s{S_BK}, s{S_BK}, s{S_T0}',
          f'    s_lshl_b32 s{S_T0}, s{S_BK}, 4', f'    s_and_b32 s{S_T1}, s{S_WAVE}, 8', f'    s_add_u32 s{S_T0}, s{S_T0}, s{S_T1}',
          '    s_waitcnt lgkmcnt(0)']
    L += srd(12, 26, None, 500 * 4096, WSB + META)
    L += [f'    buffer_load_dwordx2 v[{E0}:{E0+1}], v{E0}, s[12:15], s{S_T0} offen']
    if P.get('pf'): L += pf_info()
    L += srd(16, 26, None, 16000, WSB + META + MAXO)
    L += [f'    buffer_load_dwordx4 v[{MX}:{MX+3}], v{T16}, s[16:19], 0 offen']
    L += wloads2()
    L += srd(4, 26, None, 500 * CHB, WSB)
    L += ['    s_mov_b32 s8, s28', '    s_or_b32 s9, s29, 0x80000', '    s_mov_b32 s10, 800000', '    s_mov_b32 s11, 0x00020000']
    L += [f'    s_mul_i32 s{S_T0}, s{S_BK}, 25000', f'    s_mul_i32 s{S_T1}, s{S_BK}, 6250']
    L += srd(12, 28, S_T0, 25000) + srd(20, 32, S_T0, 25000) + srd(16, 30, S_T1, 6250)
    F = 24
    L += [f'    v_lshlrev_b32 v{T4}, 2, v0', f'    v_lshlrev_b32 v{KB}, 3, v0', f'    v_lshlrev_b32 v{POS0}, 1, v0',
          f'    v_mov_b32 v{F}, 0', f'    v_mov_b32 v{F+1}, 0',
          f'    ds_write_b64 v{KB}, v[{F}:{F+1}]',
          f'    v_bfrev_b32 v{F+4}, 1', f'    v_bfrev_b32 v{F+5}, 1', f'    v_bfrev_b32 v{F+6}, 1', f'    v_bfrev_b32 v{F+7}, 1',
          f'    v_add_u32 v{T16}, {LISTB}, v{T16}']
    for z in range(4): L.append(f'    ds_write_b128 v{T16}, v[{F+4}:{F+7}] offset:{16384*z}')
    if LAY == 1: L += [f'    v_mov_b32 v{KB}, v{T4}']
    if LAY == 2: L += [f'    s_lshl_b32 s{S_T0}, s{S_WAVE}, 7', f'    v_add_u32 v{PQ}, s{S_T0}, v{POS0}', f'    v_lshlrev_b32 v{KB}, 1, v{PQ}']
    L += [f'    v_add_u32 v{KB}, {KEYS}, v{KB}', f'    v_mov_b32 v{FOUR}, 4', f'    v_mov_b32 v{MHI}, 0xffff0000',
          f'    v_mov_b32 v{NH}, 0x{f2u(-32767.0*32767.0/2):08x}',
          f'    s_mov_b32 s{S_T0}, {CHB}', f'    v_mul_u32_u24 v{CB}, s{S_T0}, v{CB}',
          f'    s_mov_b32 s{S_P21}, 0x200000', f'    s_mov_b32 s{S_ACC}, {ACC}']
    if P.get('pf'): L += pf_addr() + pf_m(0)
    L += bar(False)
    N0, N1, B0, B1 = 28, 29, 30, 31
    L += [f'    v_lshrrev_b32 v{N0}, 16, v{E0}', f'    v_lshrrev_b32 v{N1}, 16, v{E0+1}',
          f'    v_and_b32 v{E0}, 0xffff, v{E0}', f'    v_and_b32 v{E0+1}, 0xffff, v{E0+1}',
          f'    v_sub_u32 v{N0}, v{N0}, v{E0}', f'    v_sub_u32 v{N1}, v{N1}, v{E0+1}',
          f'    v_mad_u32_u24 v{B0}, v{E0}, 12, v{CB}', f'    v_mad_u32_u24 v{B1}, v{E0+1}, 12, v{CB}',
          f'    v_max_u32 v{E0}, v{N0}, v{N1}', f'    v_cmp_lt_u32 vcc, 64, v{E0}',
          f'    v_min_u32 v{N0}, 64, v{N0}', f'    v_min_u32 v{N1}, 64, v{N1}',
          f'    v_lshl_or_b32 v{SI+1}, v{N1}, 16, v{N0}',
          f'    v_add_u32 v{S}, 0x10001, v{SI+1}', f'    v_lshrrev_b32 v{S}, 1, v{S}', f'    v_and_b32 v{S}, 0x7fff7fff, v{S}',
          f'    v_mov_b32 v{SI}, v{S}',
          f'    v_max3_u32 v{MX}, v{MX}, v{MX+1}, v{MX+2}', f'    v_max_u32 v{MX}, v{MX}, v{MX+3}',
          f'    v_cndmask_b32 v{SI+2}, v{MX}, v{MHI}, vcc']
    for z in zip(dpp_scan('v_add_u32', SI), dpp_scan('v_add_u32', SI + 1), dpp_scan('v_max_u32', SI + 2)): L += list(z)
    L += [f'    s_lshl_b32 s{S_T0}, s{S_WAVE}, 4', f'    v_mov_b32 v{E0}, s{S_T0}',
          '    s_mov_b32 exec_lo, 0', '    s_brev_b32 exec_hi, 1',
          f'    ds_write_b96 v{E0}, v[{SI}:{SI+2}] offset:{SCR}', FULL,
          f'    v_and_b32 v{E0}, 60, v{T4}', f'    v_lshlrev_b32 v{E0}, 2, v{E0}',
          f'    v_sub_u32 v{S}, v{SI}, v{S}']
    L += bar()
    R = 12
    L += [f'    ds_read_b96 v[{R}:{R+2}], v{E0} offset:{SCR}', f'    v_mov_b32 v{R+3}, v{R}']
    for z in zip(dpp_scan('v_add_u32', R, False), dpp_scan('v_add_u32', R + 1, False), dpp_scan('v_max_u32', R + 2, False)): L += list(z)
    L += [f'    v_sub_u32 v{R+3}, v{R}, v{R+3}',
          f'    v_readlane_b32 s26, v{R}, 7', f'    v_readlane_b32 s27, v{R}, 15',
          f'    v_readlane_b32 s28, v{R+1}, 7', f'    v_readlane_b32 s29, v{R+1}, 15',
          f'    v_readlane_b32 s{S_MG}, v{R+2}, 15', f'    v_readlane_b32 s{S_T2}, v{R+3}, s{S_WAVE}',
          '    s_sub_u32 s27, s27, s26', '    s_sub_u32 s29, s29, s28',
          f'    s_cmp_ge_u32 s{S_WAVE}, 8', f'    s_cselect_b32 s{S_T0}, s26, 0', f'    s_cselect_b32 s{S_T1}, {2*LQ}, 0', f'    s_add_u32 s{S_T1}, s{S_T1}, {LISTB}',
          f'    s_sub_u32 s{S_T2}, s{S_T2}, s{S_T0}',
          f'    v_add_u32 v{S}, s{S_T2}, v{S}']
    for r, cap in ((26, 3584), (27, 3584), (28, STG // 2), (29, STG // 2)):
        L += [f'    s_and_b32 s{S_T0}, s{r}, 0xffff', f'    s_lshr_b32 s{r}, s{r}, 16', f'    s_max_u32 s{r}, s{r}, s{S_T0}',
              f'    s_cmp_gt_u32 s{r}, {cap}', '    s_cbranch_scc1 .Lslow']
    L += [f'    s_lshr_b32 s{S_MG}, s{S_MG}, 7', f'    s_cmp_gt_u32 s{S_MG}, 215', '    s_cbranch_scc1 .Lslow',
          f'    s_lshl_b32 s{S_MG}, s{S_MG}, 23',
          f'    s_add_u32 s{S_MG+1}, s{S_MG}, {(39<<23)+0x4000}', f'    s_add_u32 s{S_MG}, s{S_MG}, {(25<<23)+0x4000}']
    A0, A1, RM = 8, 9, 10
    L += [f'    v_and_b32 v{A0}, 0xffff, v{S}', f'    v_lshrrev_b32 v{A1}, 16, v{S}',
          f'    v_lshl_add_u32 v{A0}, v{A0}, 2, s{S_T1}', f'    v_lshl_add_u32 v{A1}, v{A1}, 2, s{S_T1}']
    for z, (a, b, n) in enumerate(((A0, B0, N0), (A1, B1, N1))):
        o = LQ * z
        L += [f'    v_mov_b32 v{RM}, v{n}', f'    v_cmpx_lt_i32 vcc, 0, v{RM}', f'.Lll{z}:',
              f'    ds_write_b32 v{a}, v{b} offset:{o}', f'    v_add_u32 v{RM}, -2, v{RM}',
              f'    v_add_u32 v{a}, 4, v{a}', f'    v_add_u32 v{b}, 24, v{b}',
              f'    v_cmpx_lt_i32 vcc, 0, v{RM}', f'    s_cbranch_execnz .Lll{z}', FULL,
              f'    v_add_u32 v{a}, -4, v{a}', f'    v_add_u32 v{b}, {(1<<30)-24}, v{b}',
              f'    v_cmpx_ne_u32 vcc, 0, v{RM}', f'    ds_write_b32 v{a}, v{b} offset:{o}', FULL]
    LA_, LC = 11, 12
    L += [f'    v_and_b32 v{LA_}, -4, v{POS0}', f'    v_add_u32 v{LA_}, {LISTB}, v{LA_}',
          f'    v_bfe_u32 v{LC}, v{POS0}, 1, 1', f'    s_mov_b32 s{S_T0}, {(1<<30)+12}', f'    v_mul_lo_u32 v{LC}, v{LC}, s{S_T0}',
          f'    v_mov_b32 v{LC+1}, 0xbfffffff']
    L += repack()
    L += bar()
    def lread(q): return [f'    ds_read_b32 v{areg(q,j)}, v{LA_} offset:{LQ*q+2048*j}' for j in range(7)]
    def lfix(q, j): return [f'    v_add_u32 v{areg(q,j)}, v{LC}, v{areg(q,j)}', f'    v_and_b32 v{areg(q,j)}, v{LC+1}, v{areg(q,j)}']
    L += lread(0) + lread(1)
    for j in range(7): L += lfix(0, j) + rec_load(0, j)
    L += pf_rec(1)
    L += lread(2) + lread(3)
    for q in (1, 2, 3):
        for j in range(7): L += lfix(q, j)
    L1 = [rec_load(1, j) for j in range(7)]; L2 = [rec_load(2, j) for j in range(7)]; L3 = [rec_load(3, j) for j in range(7)]
    a1, a2, a3 = P.get('k2_l1', (2, 1, 4))
    H0 = [hist(0, j) for j in range(7)]
    L += flat(H0[:7 - a1])
    for z in range(a1): L += L1[z] + H0[7 - a1 + z]
    L += bar()
    L += wscan(0)
    L += [f'    v_mov_b32 v{Y+z}, 0' for z in range(4)] + [f'    v_lshl_add_u32 v{AD}, v{POS0}, 3, s{S_ACC}']
    for z in range(4): L.append(f'    ds_write_b128 v{AD}, v[{Y}:{Y+3}] offset:{16384*z}')
    L += [f'    v_add_u32 v{AD}, 65536, v{AD}', f'    v_cmpx_gt_u32 vcc, {(75024-65536)//8}, v{POS0}',
          f'    ds_write_b128 v{AD}, v[{Y}:{Y+3}]', FULL,
          f'    ds_write_b32 v{Y}, v{Y} offset:{SCR}']
    L += flat(L1[a1:a1 + a2])
    L += bar()
    L += flat(interleave(place(0), L1[a1 + a2:]))
    L += bar()
    sched = P.get('sched') or SCHED[P.get('sv', 0)]
    PL = {q: place(q) for q in (1, 2, 3)}
    TL = tail_loads()
    seen = set()
    L += [';@R0']
    for tok in sched.split():
        if tok[0] == 'S': L += [f'    s_setprio {tok[1]}']; continue
        if tok == 'B': L += ['    s_barrier']; continue
        assert tok in '|T' or tok not in seen, tok
        seen.add(tok)
        c = tok[0]
        if c == '|': L += bar(); continue
        if c == 'T': L += stamp(); continue
        q = int(tok[1]); j = int(tok[2]) if len(tok) > 2 else None
        if c == 'g': L += gather(q, j)
        elif c == 'a': assert f'g{q}{j}' in seen; L += acc(q, j)
        elif c == 'r': L += flat(readback(q))
        elif c == 'h': L += hist(q, j)
        elif c == 's': L += wscan(q)
        elif c == 'p': L += PL[q][j]
        elif c == 'l':
            if q == 3: assert f'a0{j}' in seen
            L += rec_load(q, j)
        elif c == 't': assert 'a26' in seen and 'p38' in seen; L += TL[q]
        elif c == 'e':
            e = [X[1] + 3 + 4 * (3 * q + z) for z in range(3)]
            L += [f'    v_lshlrev_b32 v{e[1]}, 1, v{T4}', f'    s_movk_i32 s{S_T0}, {8192*q}', f'    s_movk_i32 s{S_T1}, {2048*q}',
                  f'    buffer_load_dword v{e[0]}, v{e[1]}, s[12:15], s{S_T0} offen',
                  f'    buffer_load_dword v{e[1]}, v{e[1]}, s[12:15], s{S_T0} offen offset:4',
                  f'    buffer_load_ushort v{e[2]}, v{POS0}, s[16:19], s{S_T1} offen']
        elif c == 'M':
            assert 'a26' in seen and 'p38' in seen and all(f'e{z}' in seen for z in range(4))
            for i in range(4):
                e = [X[1] + 3 + 4 * (3 * i + z) for z in range(3)]
                L += [f'    v_mov_b32 v{MR+2*i}, v{e[0]}', f'    v_mov_b32 v{MR+2*i+1}, v{e[1]}', f'    v_mov_b32 v{DR+i}, v{e[2]}']
                seen.add(f't{i}')
        elif c == 'P':
            assert f't{q}' in seen
            g = pstage(q)
            if q == 3: g = g[:2] + [f'    s_cmp_lg_u32 s{S_WAVE}, 0', f'    s_cbranch_scc1 .Lp3f{VAR}'] + g[2:] + [f'.Lp3f{VAR}:']
            L += g
        elif c == 'f': L += pf_rec(q)
        elif c == 'm': L += pf_m(q)
        else: assert 0, tok
    need = [f'{c}{q}{j}' for c in 'ga' for q in range(4) for j in range(7)] + [f'h{q}{j}' for q in (1, 2, 3) for j in range(7)] + \
           [f'p{q}{j}' for q in (1, 2, 3) for j in range(9)] + [f'l{q}{j}' for q in (2, 3) for j in range(7)] + \
           [f'{c}{q}' for c in 'rtP' for q in range(4)] + ['s1', 's2', 's3']
    assert all(n in seen for n in need), [n for n in need if n not in seen]
    L += ['    s_waitcnt vmcnt(0)', '    s_nop 4', ';@R1']
    L += wunpack() + dec_consts()
    L += bar()
    L += tail(front_fast, 'f')
    L += dpp_scan('v_add_u32', SUM)
    L += ['    s_mov_b32 exec_lo, 0', '    s_brev_b32 exec_hi, 1', f'    ds_add_u32 v{FOUR}, v{SUM} offset:{SCR-4}', FULL]
    L += [f'    s_add_u32 s26, s26, s27', '    s_add_u32 s28, s28, s29', '    s_add_u32 s26, s26, s28']
    if LAY: L += ['    s_lshr_b32 s26, s26, 1']
    L += bar()
    L += [f'    ds_read_b32 v{SUM}, v{FOUR} offset:{SCR-4}', f'    v_readfirstlane_b32 s27, v{SUM}',
          '    s_cmp_lg_u32 s26, s27', '    s_cbranch_scc1 .Lslow']
    if prof:
        L += ['    s_waitcnt vmcnt(0)'] + stamp() + ['    s_waitcnt lgkmcnt(0)'] + stamp()
        L += ['    s_waitcnt lgkmcnt(0)', '    s_memtime s[34:35]', f'    v_writelane_b32 v{PV}, s34, 31']
        if P.get('hprof'):
            L += ['    s_cmp_lg_u32 s2, 0', '    s_cbranch_scc1 .Lk2_end', f'    s_cmp_gt_u32 s{S_WAVE}, 3', '    s_cbranch_scc1 .Lk2_end',
                  '    s_load_dwordx4 s[4:7], s[0:1], 96', '    s_waitcnt lgkmcnt(0)']
            L += srd(8, 6, None, 250 * 128, WSB + PROF)
            L += [f'    v_lshlrev_b32 v8, 5, v{T4}', f'    v_readlane_b32 s12, v{PV}, 0', '    v_mov_b32 v30, 0', f'    v_cmp_gt_u32 vcc, 1000, v{T4}']
            for z, i in enumerate((0, 2, 7, 10, 11)):
                L += [f'    buffer_load_dword v9, v8, s[8:11], 0 offen offset:{4*i}', '    v_sub_u32 v9, s12, v9', '    v_cndmask_b32 v10, 0, v9, vcc']
                if z: L += ['    v_not_b32 v9, v9']
                L += ['    v_cndmask_b32 v9, 0, v9, vcc'] + dpp_scan('v_max_u32', 9) + dpp_scan('v_add_u32', 10)
                L += ['    s_mov_b32 exec_lo, 0', '    s_brev_b32 exec_hi, 1', f'    global_atomic_umax v30, v9, s[4:5] offset:{8*z}', f'    global_atomic_add v30, v10, s[4:5] offset:{8*z+4}', FULL]
            L += [f'    s_cmp_lg_u32 s{S_WAVE}, 0', '    s_cbranch_scc1 .Lk2_end', '    s_mov_b64 exec, 1']
            for z, i in enumerate((2, 5, 15, 17)):
                L += [f'    v_readlane_b32 s13, v{PV}, {i}', '    s_sub_u32 s13, s13, s12', '    v_mov_b32 v9, s13', f'    global_store_dword v30, v9, s[4:5] offset:{40+4*z}']
            L += [f'    v_readlane_b32 s13, v{PV}, 31', f'    v_readlane_b32 s12, v{PV}, 30', '    s_sub_u32 s13, s13, s12', '    v_mov_b32 v9, s13', f'    global_store_dword v30, v9, s[4:5] offset:56', '    s_endpgm']
        L += [f'    s_cmp_lg_u32 s{S_WAVE}, 0', '    s_cbranch_scc1 .Lk2_end', '    s_load_dwordx2 s[26:27], s[0:1], 104', '    s_waitcnt lgkmcnt(0)']
        L += srd(8, 26, None, 65536, WSB + PROF + 0x10000)
        L += ['    s_lshl_b32 s12, s2, 7', '    s_bfm_b64 exec, 32, 0', f'    buffer_store_dword v{PV}, v{T4}, s[8:11], s12 offen']
    L += ['.Lk2_end:', '    s_endpgm']
    L += ['.Lslow:', '    s_waitcnt vmcnt(0) lgkmcnt(0)', '    s_barrier']
    if P.get('dbgslow'):
        L += ['    s_load_dwordx2 s[26:27], s[0:1], 96', '    s_waitcnt lgkmcnt(0)', '    v_mov_b32 v8, 0', '    v_mov_b32 v9, 1',
              '    s_mov_b64 exec, 1', '    global_atomic_add v8, v9, s[26:27]', FULL]
    L += [f'    v_mov_b32 v{Y+z}, 0' for z in range(4)] + [f'    v_lshlrev_b32 v{AD}, 2, v{T4}']
    for z in range(4): L.append(f'    ds_write_b128 v{AD}, v[{Y}:{Y+3}] offset:{16384*z}')
    L.append(f'    v_add_u32 v{AD}, 65536, v{AD}')
    for z in range(3): L.append(f'    ds_write_b128 v{AD}, v[{Y}:{Y+3}] offset:{16384*z}')
    L += ['    s_load_dwordx4 s[28:31], s[0:1], 56', '    s_load_dwordx2 s[26:27], s[0:1], 72', '    s_load_dwordx2 s[32:33], s[0:1], 80',
          '    s_waitcnt lgkmcnt(0)',
          f'    s_load_dwordx16 s[{W_RBF}:{W_RBF+15}], s[28:29], 0',
          f'    s_load_dwordx16 s[{W_SBF}:{W_SBF+15}], s[30:31], 0',
          f'    s_load_dwordx16 s[{W_SBF+16}:{W_SBF+31}], s[30:31], 64',
          f'    s_load_dwordx8 s[{W_DN}:{W_DN+7}], s[26:27], 0',
          f'    s_load_dwordx8 s[{W_UP}:{W_UP+7}], s[32:33], 0',
          '    s_waitcnt lgkmcnt(0)',
          '    s_load_dwordx2 s[26:27], s[0:1], 104']
    L += repack()
    L += flat(tail_loads()) + pall('s') + wunpack()
    L += ['    s_waitcnt vmcnt(0) lgkmcnt(0)', '    s_barrier']
    LN, UO, T3, G2 = 24, 25, 28, 32
    L += [f'    s_lshl_b32 s{S_T0}, s{S_BK}, 4', f'    s_add_u32 s{S_T0}, s{S_T0}, {WSB+META}',
          f'    s_add_u32 s26, s26, s{S_T0}', '    s_addc_u32 s27, s27, 0',
          f'    s_mov_b32 s40, s{S_WAVE}', f'    v_bfe_u32 v{LN}, v{T4}, 2, 6',
          '.Lsl_c:', '    s_lshl_b32 s42, s40, 12', '    s_load_dwordx4 s[36:39], s[26:27], s42',
          f'    s_mul_i32 s44, s40, {CHB}', '    s_mov_b32 s41, 0', '    s_waitcnt lgkmcnt(0)',
          '.Lsl_q:', '    s_and_b32 s42, s36, 0xffff', '    s_lshr_b32 s43, s36, 16',
          '.Lsl_u:', '    s_cmp_ge_u32 s42, s43', '    s_cbranch_scc1 .Lsl_nq',
          f'    v_add_u32 v{UO}, s42, v{LN}', f'    v_cmpx_gt_u32 vcc, s43, v{UO}',
          f'    v_mul_u32_u24 v{UO}, 12, v{UO}',
          f'    buffer_load_dwordx3 v[{T3}:{T3+2}], v{UO}, s[4:7], s44 offen']
    for h in range(2):
        k = T3 + h
        L += [f'    v_lshrrev_b32 v{G2}, 12, v{k}', f'    v_cmpx_ne_u32 vcc, 0, v{k}',
              f'    buffer_load_dwordx2 v[{G2}:{G2+1}], v{G2}, s[8:11], 0 idxen',
              f'    v_cvt_f32_i32_sdwa v{CP}, sext(v{T3+2}) dst_sel:DWORD dst_unused:UNUSED_PAD src0_sel:WORD_{h}',
              f'    v_mul_f32 v{CP}, 0x{f2u(1.0/32767):08x}, v{CP}',
              f'    v_add_f32 v{CP+1}, v{CP}, v{CP}', f'    v_fma_f32 v{CP+1}, v{CP+1}, v{CP}, -1.0',
              f'    v_and_b32 v{AD}, 0xfff, v{k}', f'    v_lshlrev_b32 v{AD}, 5, v{AD}',
              f'    v_lshlrev_b32 v{MP}, 16, v{G2}', f'    v_and_b32 v{MP+1}, v{MHI}, v{G2}',
              f'    v_lshlrev_b32 v{MP+2}, 16, v{G2+1}', f'    v_and_b32 v{MP+3}, v{MHI}, v{G2+1}']
        for z in range(8):
            L += [f'    v_mul_f32 v{Y+z}, v{CP+(z>>2)}, v{MP+(z&3)}', f'    ds_add_f32 v{AD}, v{Y+z} offset:{4*z}']
    L += [FULL, '    s_waitcnt vmcnt(0) lgkmcnt(0)', '    s_add_u32 s42, s42, 64', '    s_branch .Lsl_u',
          '.Lsl_nq:', '    s_mov_b32 s36, s37', '    s_mov_b32 s37, s38', '    s_mov_b32 s38, s39',
          '    s_add_u32 s41, s41, 1', '    s_cmp_lt_u32 s41, 4', '    s_cbranch_scc1 .Lsl_q',
          '    s_add_u32 s40, s40, 16', '    s_cmp_lt_u32 s40, 500', '    s_cbranch_scc1 .Lsl_c',
          f'    v_lshlrev_b32 v{EA}, 3, v{T4}', f'    v_add_u32 v{EA}, 32, v{EA}',
          '    s_waitcnt vmcnt(0) lgkmcnt(0)', '    s_barrier']
    L += tail(front_slow, 's')
    L += ['    s_endpgm']
    x = P.get('dbgx', 0)
    if x & 1: L = [l for l in L if not ('idxen' in l and 'dwordx2' in l)]
    if x & 2: L = [l for l in L if 'ds_add_u64' not in l]
    if x & 4: L = [l for l in L if not any(o in l for o in ('v_pk_fma_f32 v[14', 'v_pk_fma_f32 v[16', 'v_pk_fma_f32 v[18', 'v_pk_fma_f32 v[20', 'v_mad_u64', 'v_lshl_or_b32 v20', 'v_lshlrev_b32 v15', 'v_lshlrev_b32 v19', 'v_cvt_f32_i32_sdwa', 'v_fma_f32 v9'))]
    if x: L = [l.replace('s_cmp_lg_u32 s26, s27', 's_cmp_lg_u32 s26, s26') for l in L]
    return process(L)
```

```python
from asmlib import *

NWG1 = 250
CH = 25600
CHB = 159744
META = 0x5000000
MAXO = 0x200000
PROF = 0x6000000
MAG_OUT = 1374390
MAG_Q = 21474

def dpp_scan(op, r, full=True):
    L = []
    for s in (1, 2, 4, 8):
        L.append(f'    {op}_dpp v{r}, v{r}, v{r} row_shr:{s} row_mask:0xf bank_mask:0xf')
    if full:
        L.append(f'    {op}_dpp v{r}, v{r}, v{r} row_bcast:15 row_mask:0xa bank_mask:0xf')
        L.append(f'    {op}_dpp v{r}, v{r}, v{r} row_bcast:31 row_mask:0xc bank_mask:0xf')
    return L

def srd(d, plo, addreg, nrec, extra=0):
    L = []
    if addreg is None:
        L.append(f'    s_add_u32 s{d}, s{plo}, {extra}')
        L.append(f'    s_addc_u32 s{d+1}, s{plo+1}, 0')
    else:
        L.append(f'    s_add_u32 s{d}, s{plo}, s{addreg}')
        L.append(f'    s_addc_u32 s{d+1}, s{plo+1}, 0')
        if extra:
            L.append(f'    s_add_u32 s{d}, s{d}, {extra}')
            L.append(f'    s_addc_u32 s{d+1}, s{d+1}, 0')
    L.append(f'    s_mov_b32 s{d+2}, {nrec}')
    L.append(f'    s_mov_b32 s{d+3}, 0x00020000')
    return L

def gen_k1(P):
    LD = P.get('k1_ld', 'nt'); ST = P.get('k1_st', 'sc1'); prof = P.get('prof', 0)
    WSB = P.get('wsb', 0); IL = P.get('k1_il', 1)
    CS, KEYS, SCR = 4096, 57344, 4096
    T16, T8, T4, FOUR, T12 = 1, 2, 3, 4, 5
    TMP = [6, 7, 8, 9, 10, 11, 127, 0]
    A, B, ANG = 12, 64, 114
    def rin(k, j): return (A if k == 0 else B) + (4 * j if j < 6 else 48)
    def rout(k, j): return (A if k == 0 else B) + (24 + 4 * j if j < 6 else 49)
    def rang(j): return ANG + 2 * j
    S_WAVE, S_WAVE4, S_MO, S_MQ, S_NEG, S_TOT, S_PRE, S_ROW = 46, 47, 48, 49, 50, 51, 52, 53
    sro = [0]
    def soff(val):
        r = 42 + sro[0] % 4; sro[0] += 1
        return r, f'    s_mov_b32 s{r}, {val}'
    pc = [0]
    def stamp():
        if not prof: return []
        r = 60 + 2 * pc[0]; pc[0] += 1
        return [f'    s_memrealtime s[{r}:{r+1}]']
    def bar(): return ['    s_waitcnt lgkmcnt(0)', '    s_barrier'] + stamp()

    def load_row(k, j):
        rec = k * CH + j * 4096
        g = []
        if IL:
            if j < 6: rec = (k * 6 + j) * NWG1 * 4096
            else:
                rec = 12 * NWG1 * 4096 + k * NWG1 * 1024
                r, _ = soff(0); t = f'    s_sub_u32 s{r}, {rec*4}, s59'
                g.append([t, f'    buffer_load_dword v{rin(k,j)}, v{T4}, s[8:11], s{r} offen {LD}'])
                g.append([t, f'    buffer_load_dword v{rout(k,j)}, v{T4}, s[12:15], s{r} offen {LD}'])
                r, _ = soff(0)
                g.append([f'    s_sub_u32 s{r}, {rec*4}, s59', f'    s_lshr_b32 s{r}, s{r}, 1', f'    v_lshrrev_b32 v{rang(j)}, 1, v{T4}',
                          f'    buffer_load_ushort v{rang(j)}, v{rang(j)}, s[16:19], s{r} offen {LD}'])
                return g
        r, t = soff(rec * 4)
        if j < 6:
            g.append([t, f'    buffer_load_dwordx4 v[{rin(k,j)}:{rin(k,j)+3}], v{T16}, s[8:11], s{r} offen {LD}'])
            g.append([t, f'    buffer_load_dwordx4 v[{rout(k,j)}:{rout(k,j)+3}], v{T16}, s[12:15], s{r} offen {LD}'])
            r, t = soff(rec * 2)
            g.append([t, f'    buffer_load_dwordx2 v[{rang(j)}:{rang(j)+1}], v{T8}, s[16:19], s{r} offen {LD}'])
        else:
            g.append([t, f'    buffer_load_dword v{rin(k,j)}, v{T4}, s[8:11], s{r} offen {LD}'])
            g.append([t, f'    buffer_load_dword v{rout(k,j)}, v{T4}, s[12:15], s{r} offen {LD}'])
            r, t = soff(rec * 2)
            g.append([t, f'    v_lshrrev_b32 v{rang(j)}, 1, v{T4}',
                      f'    buffer_load_ushort v{rang(j)}, v{rang(j)}, s[16:19], s{r} offen {LD}'])
        return g
    def recs(k):
        R = []
        for j in range(7):
            for i in range(4 if j < 6 else 1):
                R.append((j, rin(k, j) + i, rout(k, j) + i, rang(j) + i // 2, i & 1))
        return R
    OV = P.get('k1_ov', 0); C1 = 63
    AL = P.get('k1_al', 0)
    def conv1(I_, O, a, hi, ta, tb, INC):
        if AL and INC == C1:
            return [
                f'    v_mul_hi_u32_u24 v{ta}, s{S_MO}, v{O}',
                f'    v_mul_hi_u32_u24 v{tb}, s{S_MQ}, v{I_}',
                f'    v_mad_i32_i24 v{O}, v{ta}, s{S_NEG}, v{O}',
                f'    v_lshl_add_u32 v{ta}, v{tb}, 8, v{ta}',
                f'    v_lshl_add_u32 v{I_}, v{I_}, 12, v{O}',
                f'    v_lshlrev_b32 v{O}, 2, v{ta}',
                f'    v_add_u32 v{I_}, 1, v{I_}',
                f'    ds_add_u32 v{O}, v{INC}']
        return [
            f'    v_mul_hi_u32_u24 v{ta}, s{S_MO}, v{O}',
            f'    v_mul_hi_u32_u24 v{tb}, s{S_MQ}, v{I_}',
            f'    v_mad_i32_i24 v{O}, v{ta}, s{S_NEG}, v{O}',
            f'    v_lshl_add_u32 v{ta}, v{tb}, 8, v{ta}',
            (f'    v_and_b32 v{tb}, 0xffff0000, v{a}' if hi else f'    v_lshlrev_b32 v{tb}, 16, v{a}'),
            f'    v_lshl_add_u32 v{I_}, v{I_}, 12, v{O}',
            f'    v_mul_f32 v{tb}, 0.15915494, v{tb}',
            f'    v_lshlrev_b32 v{O}, 2, v{ta}',
            f'    v_fract_f32 v{tb}, v{tb}',
            f'    ds_add_u32 v{O}, v{INC}',
            f'    v_cos_f32 v{tb}, v{tb}',
            f'    v_add_u32 v{I_}, 1, v{I_}',
            f'    v_cvt_pknorm_i16_f32 v{tb}, v{tb}, 0',
            f'    v_lshl_or_b32 v{O}, v{ta}, 18, v{tb}',
        ]
    def conv_row(k, j, T=TMP, split=False):
        R = [r for r in recs(k) if r[0] == j]
        G = []
        for p in range(0, len(R), 2):
            g = []
            seqs = [conv1(r[1], r[2], r[3], r[4], T[2 * q], T[2 * q + 1], C1 if (OV and k) else FOUR) for q, r in enumerate(R[p:p + 2])]
            for z in zip(*seqs): g.extend(z)
            G.append(g)
        return G if split else flat(G)
    def place(k, depth=5):
        R = recs(k); G = []
        n = len(R)
        for s in range(n + depth):
            g = []
            if AL and k:
                if s < n:
                    _, I_, O, a, hi = R[s]; t = TMP[s % (depth + 1)]
                    g += [f'    ds_add_rtn_u32 v{O}, v{O}, v{FOUR}']
                if 0 <= s - depth + 1 < n:
                    _, I_, O, a, hi = R[s - depth + 1]; t = TMP[(s + 1) % 2]
                    g += [(f'    v_and_b32 v{t}, 0xffff0000, v{a}' if hi else f'    v_lshlrev_b32 v{t}, 16, v{a}'),
                          f'    v_mul_f32 v{t}, 0.15915494, v{t}', f'    v_fract_f32 v{t}, v{t}', f'    v_cos_f32 v{t}, v{t}']
                if s - depth >= 0:
                    _, I_, O, a, hi = R[s - depth]; t = TMP[s % 2]
                    g += [f'    ds_write_b32 v{O}, v{I_} offset:{KEYS}', f'    v_cvt_pknorm_i16_f32 v{t}, v{t}, 0',
                          f'    v_lshrrev_b32 v{O}, 1, v{O}', f'    ds_write_b16 v{O}, v{t} offset:{CS}']
                G.append(g); continue
            if s - depth >= 0:
                _, I_, O, _, _ = R[s - depth]; t = TMP[(s - depth) % (depth + 1)]
                if OV and k == 0:
                    g += [f'    v_and_b32 v{t}, 0xffff, v{t}', f'    ds_write_b16 v{t}, v{O} offset:{CS}',
                          f'    v_add_u32 v{t}, v{t}, v{t}', f'    ds_write_b32 v{t}, v{I_} offset:{KEYS}']
                else:
                    g += [f'    ds_write_b32 v{t}, v{I_} offset:{KEYS}',
                          f'    v_lshrrev_b32 v{t}, 1, v{t}',
                          f'    ds_write_b16 v{t}, v{O} offset:{CS}']
            if s < n:
                _, I_, O, _, _ = R[s]; t = TMP[s % (depth + 1)]
                g += [f'    v_lshrrev_b32 v{t}, 16, v{O}',
                      f'    ds_add_rtn_u32 v{t}, v{t}, v{FOUR}']
            G.append(g)
        return G
    def scan(k, mid1=(), mid2=()):
        a, b, c, d, f = TMP[0:5]
        wsr = 20 if k == 0 else 32
        L = [f'    ds_read_b32 v{a}, v{T4}',
             f'    v_mov_b32 v{c}, s{S_WAVE4}'] + \
            ([f'    v_lshrrev_b32 v{a}, 14, v{a}', f'    v_mov_b32 v{FOUR}, 4'] if OV and k else []) + [
             f'    v_add_u32 v{a}, 4, v{a}',
             f'    v_and_b32 v{a}, -8, v{a}',
             f'    v_mov_b32 v{b}, v{a}']
        L += dpp_scan('v_add_u32', b)
        L += ['    s_mov_b32 exec_lo, 0', '    s_brev_b32 exec_hi, 1',
              f'    ds_write_b32 v{c}, v{b} offset:{SCR}',
              '    s_mov_b64 exec, -1',
              f'    v_and_b32 v{c}, 63, v{T4}']
        L += flat(mid1)
        L += bar()
        L += [f'    ds_read_b32 v{d}, v{c} offset:{SCR}',
              f'    v_and_b32 v{c}, 0xfff, v{T16}',
              f'    v_mov_b32 v{f}, v{d}']
        L += dpp_scan('v_add_u32', f, full=False)
        L += [f'    v_sub_u32 v{d}, v{f}, v{d}',
              f'    v_readlane_b32 s{S_TOT}, v{f}, 15',
              f'    v_readlane_b32 s{S_PRE}, v{d}, s{S_WAVE}',
              f'    v_mov_b32 v{d}, 0',
              f'    v_add_u32 v{b}, s{S_PRE}, v{b}',
              f'    v_sub_u32 v{a}, v{b}, v{a}',
              ] + ([f'    v_lshrrev_b32 v{f}, 1, v{a}', f'    v_mov_b32 v{FOUR}, 2', f'    ds_write_b32 v{T4}, v{f}'] if OV and k == 0 else [f'    ds_write_b32 v{T4}, v{a}']) + [
              f'    ds_write_b32 v{b}, v{d} offset:{KEYS-4}',
              f'    v_lshrrev_b32 v{a}, 3, v{a}',
              f'    v_lshl_or_b32 v{a}, v{b}, 13, v{a}',
              f'    s_lshr_b32 s{wsr+2}, s{S_TOT}, 1',
              f'    s_add_u32 s{wsr+2}, s{wsr+2}, s{S_TOT}',
              f'    buffer_store_dword v{a}, v{c}, s[28:31], s{S_ROW} offen',
              f'    s_add_u32 s{S_ROW}, s{S_ROW}, 4096']
        L += flat(mid2)
        L += bar()
        return L
    def rb_setup():
        return [f'    v_add_u32 v{TMP[6]}, {KEYS}, v{T8}', f'    v_add_u32 v{TMP[7]}, {KEYS+65536}, v{T8}']
    def readback(j, r):
        kb = TMP[6] if j < 8 else TMP[7]
        return [f'    ds_read_b64 v[{r}:{r+1}], v{kb} offset:{8192*(j%8)}',
                f'    ds_read_b32 v{r+2}, v{T4} offset:{CS+4096*j}']
    def store(k, j, r):
        s, t = soff(j * 12288)
        wsr = 20 if k == 0 else 32
        return [t, f'    buffer_store_dwordx3 v[{r}:{r+2}], v{T12}, s[{wsr}:{wsr+3}], s{s} offen {ST}']

    L = []
    L += ['bin_kernel:', f'    s_cmp_ge_u32 s2, {NWG1}', '    s_cbranch_scc1 .Lk1_end']
    L += ['    s_load_dwordx4 s[4:7], s[0:1], 0', '    s_load_dwordx2 s[36:37], s[0:1], 16',
          '    s_load_dwordx2 s[38:39], s[0:1], 32', '    s_load_dwordx2 s[40:41], s[0:1], 104']
    L += stamp()
    L += [f'    v_lshlrev_b32 v{T16}, 4, v0', f'    v_lshlrev_b32 v{T8}, 3, v0', f'    v_lshlrev_b32 v{T4}, 2, v0',
          f'    v_mul_u32_u24 v{T12}, 12, v0', f'    v_lshrrev_b32 v6, 6, v0', f'    v_mov_b32 v{FOUR}, 0',
          f'    v_readfirstlane_b32 s{S_WAVE}, v6',
          f'    s_mul_i32 s54, s2, {2*CH*4}', f'    s_mul_i32 s55, s2, {2*CH*2}', f'    s_mul_i32 s56, s2, 25600',
          f'    s_mul_i32 s57, s2, {2*CHB}',
          f'    s_mov_b32 s{S_MO}, {MAG_OUT}', f'    s_mov_b32 s{S_MQ}, {MAG_Q}', f'    s_mov_b32 s{S_NEG}, -3125',
          f'    s_lshl_b32 s{S_WAVE4}, s{S_WAVE}, 2',
          f'    s_lshl_b32 s{S_ROW}, s2, 13', f'    s_and_b32 s58, s{S_WAVE}, 12', f'    s_add_u32 s{S_ROW}, s{S_ROW}, s58',
          '    s_waitcnt lgkmcnt(0)']
    if IL:
        L += ['    s_lshl_b32 s54, s2, 14', '    s_lshl_b32 s55, s2, 13', '    s_mul_i32 s59, s2, 12288']
        L += srd(8, 6, 54, 0) + srd(12, 36, 54, 0) + srd(16, 38, 55, 0) + srd(24, 4, 56, 25600)
        L += ['    s_sub_u32 s10, 51200000, s54', '    s_sub_u32 s14, 51200000, s54', '    s_sub_u32 s18, 25600000, s55']
    else:
        L += srd(8, 6, 54, 2 * CH * 4) + srd(12, 36, 54, 2 * CH * 4) + srd(16, 38, 55, 2 * CH * 2) + srd(24, 4, 56, 25600)
    rows = [load_row(0, j) for j in range(7)] + [load_row(1, j) for j in range(7)]
    LA = P.get('k1_la', 2)
    ANGL = []
    if AL:
        for j in range(7, 14): ANGL.append(rows[j].pop())
    GPR = 2 if AL else 3
    L += flat(rows[0])
    L += [f'    ds_write_b32 v{T4}, v{FOUR}', f'    v_mov_b32 v{FOUR}, 4']
    L += [f'    buffer_load_dwordx4 v[{B}:{B+3}], v{T16}, s[24:27], 0 offen', '    s_movk_i32 s58, 0x4000',
          f'    buffer_load_dwordx4 v[{B+4}:{B+7}], v{T16}, s[24:27], s58 offen']
    L += srd(20, 40, 57, 0, WSB) + srd(32, 40, 57, 0, WSB + CHB) + srd(28, 40, None, MAXO + 32000, WSB + META)
    L += bar()
    for j in range(1, LA): L += flat(rows[j])
    nxt = LA
    def mred():
        R = []
        for i in range(8): R.append(f'    v_and_b32 v{B+i}, 0x7fff7fff, v{B+i}')
        for st in (4, 2, 1):
            for i in range(st): R.append(f'    v_pk_max_u16 v{B+i}, v{B+i}, v{B+i+st}')
        R += [f'    v_lshrrev_b32 v{B+1}, 16, v{B}', f'    v_and_b32 v{B}, 0xffff, v{B}', f'    v_max_u32 v{B}, v{B}, v{B+1}']
        R += dpp_scan('v_max_u32', B)
        R += [f'    s_lshl_b32 s58, s2, 6', f'    s_add_u32 s58, s58, {MAXO}', f'    v_mov_b32 v{B+1}, s{S_WAVE4}',
              '    s_mov_b32 exec_lo, 0', '    s_brev_b32 exec_hi, 1',
              f'    buffer_store_dword v{B}, v{B+1}, s[28:31], s58 offen', '    s_mov_b64 exec, -1']
        return R
    for j in range(7):
        L += flat(rows[nxt]); nxt += 1
        L += conv_row(0, j)
        if j == 0: L += mred()
    L += bar()
    rem = [g for r in rows[nxt:] for g in r]
    if OV:
        n1, n2 = P.get('k1_split', (1, 1))[:2]
        L += scan(0, rem[:n1], rem[n1:n1 + n2]); rem = rem[n1 + n2:]
        nld = 7 * GPR - len(rem)
        na = P.get('k1_na', 2)
        rem = rem + ANGL[:na]
        lag = P.get('k1_lag', 3)
        nin = P.get('k1_nin', 12)
        L += [f'    v_mov_b32 v{C1}, 0x10000']
        PL = place(0); TA = [A, A + 1, A + 2, A + 3]
        side = []; cj = 0
        for g in rem[:nin]:
            side.append(g); nld += 1
            while cj < 7 and nld >= GPR * (cj + 1) + lag and len(side) > 1: side += conv_row(1, cj, TA, True); cj += 1
        rem = rem[nin:]
        k0 = next((k for k, g in enumerate(side) if any('v_mul_hi' in l for l in g)), len(side))
        L += flat(interleave(PL[:10], side[:k0])) + flat(interleave(PL[10:], side[k0:]))
        L += rb_setup()
        L += bar()
        rb = [readback(j, A + 4 * j) for j in range(13)]
        n4 = P.get('k1_n4', 2)
        L += flat(interleave(rb, rem[:n4]) if rem[:n4] else rb); nld += len(rem[:n4]); rem = rem[n4:]
        L += stamp()
        for g in rem:
            while cj < 7 and nld >= GPR * (cj + 1) + lag: L += conv_row(1, cj); cj += 1
            L += g; nld += 1
        W0 = [store(0, j, A + 4 * j) for j in range(13)]
        w1, w2, w3 = P.get('k1_wsplit', (2, 1, 1))
        W0 = ANGL[na:] + W0
        if AL: assert 7 - na - w1 - w2 - w3 <= 2
        cv = [conv_row(1, j) for j in range(cj, 7)]
        L += flat(interleave(cv, W0[:w1]) if cv else W0[:w1]); W0 = W0[w1:]
    else:
        n1, n2, n3, n4 = P.get('k1_split', (1, 1, 7, 3))
        L += scan(0, rem[:n1], rem[n1:n1 + n2]); rem = rem[n1 + n2:]
        L += flat(interleave(place(0), rem[:n3]) if n3 else place(0)); rem = rem[n3:]
        L += rb_setup()
        L += bar()
        rb = [readback(j, A + 4 * j) for j in range(13)]
        L += [f'    v_mov_b32 v{TMP[0]}, 0', f'    ds_write_b32 v{T4}, v{TMP[0]}']
        L += flat(interleave(rb, rem[:n4]) if n4 and rem[:n4] else rb); rem = rem[n4:]
        L += bar()
        L += flat(rem)
        W0 = [store(0, j, A + 4 * j) for j in range(13)]
        w1, w2, w3 = P.get('k1_wsplit', (2, 1, 1))
        cv = [conv_row(1, j) for j in range(7)]
        L += flat(cv[:7 - w1])
        for z in range(w1): L += cv[7 - w1 + z] + W0[z]
        W0 = W0[w1:]
    L += bar()
    L += scan(1, W0[:w2], W0[w2:w2 + w3]); W0 = W0[w2 + w3:]
    L += flat(interleave(place(1), W0))
    L += rb_setup()
    L += bar()
    dst = [B + 4 * j for j in range(12)] + [A]
    for j in range(13): L += readback(j, dst[j])
    for j in range(13): L += store(1, j, dst[j])
    if prof:
        L += ['    s_waitcnt vmcnt(0)'] + stamp()
        if P.get('hprof') == 9:
            L += ['    s_load_dwordx2 s[4:5], s[0:1], 96', '    s_waitcnt lgkmcnt(0)', '    s_add_u32 s4, s4, 512', '    s_addc_u32 s5, s5, 0', f'    s_cmp_lg_u32 s{S_WAVE}, 0', '    s_cbranch_scc1 .Lk1_end',
                  '    s_mov_b64 exec, 1', '    v_mov_b32 v1, 0', '    s_not_b32 s6, s60', '    v_mov_b32 v2, s6', '    global_atomic_umax v1, v2, s[4:5]']
            for z, i in enumerate((2, 7, 11)):
                L += [f'    v_mov_b32 v2, s{60+2*i}', f'    global_atomic_umax v1, v2, s[4:5] offset:{4+8*z}',
                      f'    s_sub_u32 s6, s{60+2*i}, s60', '    v_mov_b32 v2, s6', f'    global_atomic_add v1, v2, s[4:5] offset:{8+8*z}']
        else: L += prof_dump(pc[0], 40, PROF + WSB, S_WAVE, '.Lk1_pd')
    L += ['.Lk1_end:', '    s_endpgm']
    return process(L)

def prof_dump(n, wsp, off, S_WAVE, lab, base=60):
    L = ['    s_waitcnt lgkmcnt(0)', f'    s_cmp_lg_u32 s{S_WAVE}, 0', f'    s_cbranch_scc1 {lab}']
    L += srd(8, wsp, None, 65536, off)
    L += ['    s_lshl_b32 s12, s2, 7', '    s_mov_b64 exec, 1', '    v_mov_b32 v1, 0']
    for i in range(n):
        L += [f'    v_mov_b32 v2, s{base+2*i}', f'    buffer_store_dword v2, v1, s[8:11], s12 offen offset:{4*i}']
    L += [f'{lab}:']
    return L
```

```python
from asmlib import *

NWG1 = 250
CH = 25600
CHB = 159744
META = 0x5000000
MAXO = 0x200000
PROF = 0x6000000
MAG_OUT = 1374390
MAG_Q = 21474
MAG_OUT2 = 687195
MAG_E = 42949
FLAGO = 0x208000
XCH = 0x7000000

def dpp_scan(op, r, full=True):
    L = []
    for s in (1, 2, 4, 8):
        L.append(f'    {op}_dpp v{r}, v{r}, v{r} row_shr:{s} row_mask:0xf bank_mask:0xf')
    if full:
        L.append(f'    {op}_dpp v{r}, v{r}, v{r} row_bcast:15 row_mask:0xa bank_mask:0xf')
        L.append(f'    {op}_dpp v{r}, v{r}, v{r} row_bcast:31 row_mask:0xc bank_mask:0xf')
    return L

def srd(d, plo, addreg, nrec, extra=0):
    L = []
    if addreg is None:
        L.append(f'    s_add_u32 s{d}, s{plo}, {extra}')
        L.append(f'    s_addc_u32 s{d+1}, s{plo+1}, 0')
    else:
        L.append(f'    s_add_u32 s{d}, s{plo}, s{addreg}')
        L.append(f'    s_addc_u32 s{d+1}, s{plo+1}, 0')
        if extra:
            L.append(f'    s_add_u32 s{d}, s{d}, {extra}')
            L.append(f'    s_addc_u32 s{d+1}, s{d+1}, 0')
    L.append(f'    s_mov_b32 s{d+2}, {nrec}')
    L.append(f'    s_mov_b32 s{d+3}, 0x00020000')
    return L

def gen_k1(P):
    LD = P.get('k1_ld', 'nt'); ST = P.get('k1_st', 'sc1'); prof = P.get('prof', 0)
    WSB = P.get('wsb', 0); IL = P.get('k1_il', 1)
    CS, KEYS, SCR = 4096, 57344, 4096
    T16, T8, T4, FOUR, T12 = 1, 2, 3, 4, 5
    TMP = [6, 7, 8, 9, 10, 11, 127, 0]
    A, B, ANG = 12, 64, 114
    def rin(k, j): return (A if k == 0 else B) + (4 * j if j < 6 else 48)
    def rout(k, j): return (A if k == 0 else B) + (24 + 4 * j if j < 6 else 49)
    def rang(j): return ANG + 2 * j
    S_WAVE, S_WAVE4, S_MO, S_MQ, S_NEG, S_TOT, S_PRE, S_ROW = 46, 47, 48, 49, 50, 51, 52, 53
    sro = [0]
    def soff(val):
        r = 42 + sro[0] % 4; sro[0] += 1
        return r, f'    s_mov_b32 s{r}, {val}'
    pc = [0]
    def stamp():
        if not prof: return []
        r = 60 + 2 * pc[0]; pc[0] += 1
        return [f'    s_memrealtime s[{r}:{r+1}]']
    def bar(): return ['    s_waitcnt lgkmcnt(0)', '    s_barrier'] + stamp()

    def load_row(k, j):
        rec = k * CH + j * 4096
        g = []
        if IL:
            if j < 6: rec = (k * 6 + j) * NWG1 * 4096
            else:
                rec = 12 * NWG1 * 4096 + k * NWG1 * 1024
                r, _ = soff(0); t = f'    s_sub_u32 s{r}, {rec*4}, s59'
                g.append([t, f'    buffer_load_dword v{rin(k,j)}, v{T4}, s[8:11], s{r} offen {LD}'])
                g.append([t, f'    buffer_load_dword v{rout(k,j)}, v{T4}, s[12:15], s{r} offen {LD}'])
                r, _ = soff(0)
                g.append([f'    s_sub_u32 s{r}, {rec*4}, s59', f'    s_lshr_b32 s{r}, s{r}, 1', f'    v_lshrrev_b32 v{rang(j)}, 1, v{T4}',
                          f'    buffer_load_ushort v{rang(j)}, v{rang(j)}, s[16:19], s{r} offen {LD}'])
                return g
        r, t = soff(rec * 4)
        if j < 6:
            g.append([t, f'    buffer_load_dwordx4 v[{rin(k,j)}:{rin(k,j)+3}], v{T16}, s[8:11], s{r} offen {LD}'])
            g.append([t, f'    buffer_load_dwordx4 v[{rout(k,j)}:{rout(k,j)+3}], v{T16}, s[12:15], s{r} offen {LD}'])
            r, t = soff(rec * 2)
            g.append([t, f'    buffer_load_dwordx2 v[{rang(j)}:{rang(j)+1}], v{T8}, s[16:19], s{r} offen {LD}'])
        else:
            g.append([t, f'    buffer_load_dword v{rin(k,j)}, v{T4}, s[8:11], s{r} offen {LD}'])
            g.append([t, f'    buffer_load_dword v{rout(k,j)}, v{T4}, s[12:15], s{r} offen {LD}'])
            r, t = soff(rec * 2)
            g.append([t, f'    v_lshrrev_b32 v{rang(j)}, 1, v{T4}',
                      f'    buffer_load_ushort v{rang(j)}, v{rang(j)}, s[16:19], s{r} offen {LD}'])
        return g
    def recs(k):
        R = []
        for j in range(7):
            for i in range(4 if j < 6 else 1):
                R.append((j, rin(k, j) + i, rout(k, j) + i, rang(j) + i // 2, i & 1))
        return R
    OV = P.get('k1_ov', 0); C1 = 63
    SP2 = P.get('sp2', 0); S_NEG2, S_ONE = 98, 99
    AL = P.get('k1_al', 0)
    def conv1(I_, O, a, hi, ta, tb, INC):
        if SP2:
            assert not AL
            return [
                f'    v_mul_hi_u32_u24 v{ta}, s{S_MO}, v{O}',
                f'    v_mul_hi_u32_u24 v{tb}, s{S_MQ}, v{I_}',
                f'    v_mad_i32_i24 v{O}, v{ta}, s{S_NEG}, v{O}',
                f'    v_mad_i32_i24 v{I_}, v{tb}, s{S_NEG2}, v{I_}',
                f'    v_lshl_add_u32 v{ta}, v{tb}, 7, v{ta}',
                (f'    v_and_b32 v{tb}, 0xffff0000, v{a}' if hi else f'    v_lshlrev_b32 v{tb}, 16, v{a}'),
                f'    v_lshl_add_u32 v{I_}, v{O}, 19, v{I_}',
                f'    v_mul_f32 v{tb}, 0.15915494, v{tb}',
                f'    v_lshlrev_b32 v{O}, 2, v{ta}',
                f'    v_fract_f32 v{tb}, v{tb}',
                f'    ds_add_u32 v{O}, v{INC}',
                f'    v_cos_f32 v{tb}, v{tb}',
                f'    v_add_u32 v{I_}, s{S_ONE}, v{I_}',
                f'    v_cvt_pknorm_i16_f32 v{tb}, v{tb}, 0',
                f'    v_lshl_or_b32 v{O}, v{ta}, 18, v{tb}',
            ]
        if AL and INC == C1:
            return [
                f'    v_mul_hi_u32_u24 v{ta}, s{S_MO}, v{O}',
                f'    v_mul_hi_u32_u24 v{tb}, s{S_MQ}, v{I_}',
                f'    v_mad_i32_i24 v{O}, v{ta}, s{S_NEG}, v{O}',
                f'    v_lshl_add_u32 v{ta}, v{tb}, 8, v{ta}',
                f'    v_lshl_add_u32 v{I_}, v{I_}, 12, v{O}',
                f'    v_lshlrev_b32 v{O}, 2, v{ta}',
                f'    v_add_u32 v{I_}, 1, v{I_}',
                f'    ds_add_u32 v{O}, v{INC}']
        return [
            f'    v_mul_hi_u32_u24 v{ta}, s{S_MO}, v{O}',
            f'    v_mul_hi_u32_u24 v{tb}, s{S_MQ}, v{I_}',
            f'    v_mad_i32_i24 v{O}, v{ta}, s{S_NEG}, v{O}',
            f'    v_lshl_add_u32 v{ta}, v{tb}, 8, v{ta}',
            (f'    v_and_b32 v{tb}, 0xffff0000, v{a}' if hi else f'    v_lshlrev_b32 v{tb}, 16, v{a}'),
            f'    v_lshl_add_u32 v{I_}, v{I_}, 12, v{O}',
            f'    v_mul_f32 v{tb}, 0.15915494, v{tb}',
            f'    v_lshlrev_b32 v{O}, 2, v{ta}',
            f'    v_fract_f32 v{tb}, v{tb}',
            f'    ds_add_u32 v{O}, v{INC}',
            f'    v_cos_f32 v{tb}, v{tb}',
            f'    v_add_u32 v{I_}, 1, v{I_}',
            f'    v_cvt_pknorm_i16_f32 v{tb}, v{tb}, 0',
            f'    v_lshl_or_b32 v{O}, v{ta}, 18, v{tb}',
        ]
    def conv_row(k, j, T=TMP, split=False):
        R = [r for r in recs(k) if r[0] == j]
        G = []
        for p in range(0, len(R), 2):
            g = []
            seqs = [conv1(r[1], r[2], r[3], r[4], T[2 * q], T[2 * q + 1], C1 if (OV and k) else FOUR) for q, r in enumerate(R[p:p + 2])]
            for z in zip(*seqs): g.extend(z)
            G.append(g)
        return G if split else flat(G)
    def place(k, depth=5):
        R = recs(k); G = []
        n = len(R)
        for s in range(n + depth):
            g = []
            if AL and k:
                if s < n:
                    _, I_, O, a, hi = R[s]; t = TMP[s % (depth + 1)]
                    g += [f'    ds_add_rtn_u32 v{O}, v{O}, v{FOUR}']
                if 0 <= s - depth + 1 < n:
                    _, I_, O, a, hi = R[s - depth + 1]; t = TMP[(s + 1) % 2]
                    g += [(f'    v_and_b32 v{t}, 0xffff0000, v{a}' if hi else f'    v_lshlrev_b32 v{t}, 16, v{a}'),
                          f'    v_mul_f32 v{t}, 0.15915494, v{t}', f'    v_fract_f32 v{t}, v{t}', f'    v_cos_f32 v{t}, v{t}']
                if s - depth >= 0:
                    _, I_, O, a, hi = R[s - depth]; t = TMP[s % 2]
                    g += [f'    ds_write_b32 v{O}, v{I_} offset:{KEYS}', f'    v_cvt_pknorm_i16_f32 v{t}, v{t}, 0',
                          f'    v_lshrrev_b32 v{O}, 1, v{O}', f'    ds_write_b16 v{O}, v{t} offset:{CS}']
                G.append(g); continue
            if s - depth >= 0:
                _, I_, O, _, _ = R[s - depth]; t = TMP[(s - depth) % (depth + 1)]
                if OV and k == 0:
                    g += [f'    v_and_b32 v{t}, 0xffff, v{t}', f'    ds_write_b16 v{t}, v{O} offset:{CS}',
                          f'    v_add_u32 v{t}, v{t}, v{t}', f'    ds_write_b32 v{t}, v{I_} offset:{KEYS}']
                else:
                    g += [f'    ds_write_b32 v{t}, v{I_} offset:{KEYS}',
                          f'    v_lshrrev_b32 v{t}, 1, v{t}',
                          f'    ds_write_b16 v{t}, v{O} offset:{CS}']
            if s < n:
                _, I_, O, _, _ = R[s]; t = TMP[s % (depth + 1)]
                g += [f'    v_lshrrev_b32 v{t}, 16, v{O}',
                      f'    ds_add_rtn_u32 v{t}, v{t}, v{FOUR}']
            G.append(g)
        return G
    def scan(k, mid1=(), mid2=()):
        a, b, c, d, f = TMP[0:5]
        wsr = 20 if k == 0 else 32
        L = [f'    ds_read_b32 v{a}, v{T4}',
             f'    v_mov_b32 v{c}, s{S_WAVE4}'] + \
            ([f'    v_lshrrev_b32 v{a}, 14, v{a}', f'    v_mov_b32 v{FOUR}, 4'] if OV and k else []) + [
             f'    v_add_u32 v{a}, 4, v{a}',
             f'    v_and_b32 v{a}, -8, v{a}',
             f'    v_mov_b32 v{b}, v{a}']
        L += dpp_scan('v_add_u32', b)
        L += ['    s_mov_b32 exec_lo, 0', '    s_brev_b32 exec_hi, 1',
              f'    ds_write_b32 v{c}, v{b} offset:{SCR}',
              '    s_mov_b64 exec, -1',
              f'    v_and_b32 v{c}, 63, v{T4}']
        L += flat(mid1)
        L += bar()
        L += [f'    ds_read_b32 v{d}, v{c} offset:{SCR}',
              ] + ([f'    v_lshlrev_b32 v{c}, 1, v{T16}', f'    v_and_b32 v{c}, 0xfff, v{c}'] if SP2 else [f'    v_and_b32 v{c}, 0xfff, v{T16}']) + [
              f'    v_mov_b32 v{f}, v{d}']
        L += dpp_scan('v_add_u32', f, full=False)
        L += [f'    v_sub_u32 v{d}, v{f}, v{d}',
              f'    v_readlane_b32 s{S_TOT}, v{f}, 15',
              f'    v_readlane_b32 s{S_PRE}, v{d}, s{S_WAVE}',
              f'    v_mov_b32 v{d}, 0',
              f'    v_add_u32 v{b}, s{S_PRE}, v{b}',
              f'    v_sub_u32 v{a}, v{b}, v{a}',
              ] + ([f'    v_lshrrev_b32 v{f}, 1, v{a}', f'    v_mov_b32 v{FOUR}, 2', f'    ds_write_b32 v{T4}, v{f}'] if OV and k == 0 else [f'    ds_write_b32 v{T4}, v{a}']) + [
              f'    ds_write_b32 v{b}, v{d} offset:{KEYS-4}',
              f'    v_lshrrev_b32 v{a}, 3, v{a}',
              f'    v_lshl_or_b32 v{a}, v{b}, 13, v{a}',
              f'    s_lshr_b32 s{wsr+2}, s{S_TOT}, 1',
              f'    s_add_u32 s{wsr+2}, s{wsr+2}, s{S_TOT}',
              f'    buffer_store_dword v{a}, v{c}, s[28:31], s{S_ROW} offen',
              f'    s_add_u32 s{S_ROW}, s{S_ROW}, 4096']
        L += flat(mid2)
        L += bar()
        return L
    def rb_setup():
        return [f'    v_add_u32 v{TMP[6]}, {KEYS}, v{T8}', f'    v_add_u32 v{TMP[7]}, {KEYS+65536}, v{T8}']
    def readback(j, r):
        kb = TMP[6] if j < 8 else TMP[7]
        return [f'    ds_read_b64 v[{r}:{r+1}], v{kb} offset:{8192*(j%8)}',
                f'    ds_read_b32 v{r+2}, v{T4} offset:{CS+4096*j}']
    def store(k, j, r):
        s, t = soff(j * 12288)
        wsr = 20 if k == 0 else 32
        return [t, f'    buffer_store_dwordx3 v[{r}:{r+2}], v{T12}, s[{wsr}:{wsr+3}], s{s} offen {ST}']

    L = []
    L += ['bin_kernel:', f'    s_cmp_ge_u32 s2, {NWG1}', '    s_cbranch_scc1 .Lk1_end']
    L += ['    s_load_dwordx4 s[4:7], s[0:1], 0', '    s_load_dwordx2 s[36:37], s[0:1], 16',
          '    s_load_dwordx2 s[38:39], s[0:1], 32', '    s_load_dwordx2 s[40:41], s[0:1], 104']
    L += stamp()
    L += [f'    v_lshlrev_b32 v{T16}, 4, v0', f'    v_lshlrev_b32 v{T8}, 3, v0', f'    v_lshlrev_b32 v{T4}, 2, v0',
          f'    v_mul_u32_u24 v{T12}, 12, v0', f'    v_lshrrev_b32 v6, 6, v0', f'    v_mov_b32 v{FOUR}, 0',
          f'    v_readfirstlane_b32 s{S_WAVE}, v6',
          f'    s_mul_i32 s54, s2, {2*CH*4}', f'    s_mul_i32 s55, s2, {2*CH*2}', f'    s_mul_i32 s56, s2, 25600',
          f'    s_mul_i32 s57, s2, {2*CHB}',
          f'    s_mov_b32 s{S_MO}, {MAG_OUT2 if SP2 else MAG_OUT}', f'    s_mov_b32 s{S_MQ}, {MAG_E if SP2 else MAG_Q}', f'    s_mov_b32 s{S_NEG}, {-6250 if SP2 else -3125}',
          f'    s_mov_b32 s{S_NEG2}, -100000', f'    s_mov_b32 s{S_ONE}, 0x80000',
          f'    s_lshl_b32 s{S_WAVE4}, s{S_WAVE}, 2',
          f'    s_lshl_b32 s{S_ROW}, s2, 13', f'    s_lshl_b32 s58, s{S_WAVE}, {1 if SP2 else 0}', f'    s_and_b32 s58, s58, {28 if SP2 else 12}', f'    s_add_u32 s{S_ROW}, s{S_ROW}, s58',
          '    s_waitcnt lgkmcnt(0)']
    if IL:
        L += ['    s_lshl_b32 s54, s2, 14', '    s_lshl_b32 s55, s2, 13', '    s_mul_i32 s59, s2, 12288']
        L += srd(8, 6, 54, 0) + srd(12, 36, 54, 0) + srd(16, 38, 55, 0) + srd(24, 4, 56, 25600)
        L += ['    s_sub_u32 s10, 51200000, s54', '    s_sub_u32 s14, 51200000, s54', '    s_sub_u32 s18, 25600000, s55']
    else:
        L += srd(8, 6, 54, 2 * CH * 4) + srd(12, 36, 54, 2 * CH * 4) + srd(16, 38, 55, 2 * CH * 2) + srd(24, 4, 56, 25600)
    rows = [load_row(0, j) for j in range(7)] + [load_row(1, j) for j in range(7)]
    LA = P.get('k1_la', 2)
    ANGL = []
    if AL:
        for j in range(7, 14): ANGL.append(rows[j].pop())
    GPR = 2 if AL else 3
    L += flat(rows[0])
    L += [f'    ds_write_b32 v{T4}, v{FOUR}', f'    v_mov_b32 v{FOUR}, 4']
    L += [f'    buffer_load_dwordx4 v[{B}:{B+3}], v{T16}, s[24:27], 0 offen', '    s_movk_i32 s58, 0x4000',
          f'    buffer_load_dwordx4 v[{B+4}:{B+7}], v{T16}, s[24:27], s58 offen']
    L += srd(20, 40, 57, 0, WSB) + srd(32, 40, 57, 0, WSB + CHB) + srd(28, 40, None, FLAGO + 32768, WSB + META)
    L += bar()
    for j in range(1, LA): L += flat(rows[j])
    nxt = LA
    def mred():
        R = []
        for i in range(8): R.append(f'    v_and_b32 v{B+i}, 0x7fff7fff, v{B+i}')
        if SP2:
            R.append('    s_mov_b32 s58, 0x3f803f80')
            for i in range(8): R.append(f'    v_dot2_f32_bf16 v{B+8+(i&1)}, v{B+i}, s58, ' + ('0' if i < 2 else f'v{B+8+(i&1)}'))
        for st in (4, 2, 1):
            for i in range(st): R.append(f'    v_pk_max_u16 v{B+i}, v{B+i}, v{B+i+st}')
        R += [f'    v_lshrrev_b32 v{B+1}, 16, v{B}', f'    v_and_b32 v{B}, 0xffff, v{B}', f'    v_max_u32 v{B}, v{B}, v{B+1}']
        if SP2:
            R += ['    s_nop 2', f'    v_add_f32 v{B+8}, v{B+8}, v{B+9}']
            for z in zip(dpp_scan('v_max_u32', B), dpp_scan('v_add_f32', B + 8)): R += list(z)
            R += [f'    v_and_b32 v{B+8}, 0xffff0000, v{B+8}', f'    v_or_b32 v{B}, v{B}, v{B+8}']
            R += [f'    v_lshlrev_b32 v{B+2}, 5, v{T4}', f'    v_mov_b32 v{B+3}, 0', f'    s_mov_b32 s58, {FLAGO}',
                  '    s_cmp_eq_u32 s2, 0', '    s_cselect_b64 exec, -1, 0',
                  f'    buffer_store_dword v{B+3}, v{B+2}, s[28:31], s58 offen', '    s_mov_b64 exec, -1']
        else: R += dpp_scan('v_max_u32', B)
        R += [f'    s_lshl_b32 s58, s2, 6', f'    s_add_u32 s58, s58, {MAXO}', f'    v_mov_b32 v{B+1}, s{S_WAVE4}',
              '    s_mov_b32 exec_lo, 0', '    s_brev_b32 exec_hi, 1',
              f'    buffer_store_dword v{B}, v{B+1}, s[28:31], s58 offen', '    s_mov_b64 exec, -1']
        return R
    for j in range(7):
        L += flat(rows[nxt]); nxt += 1
        L += conv_row(0, j)
        if j == 0: L += mred()
    L += bar()
    rem = [g for r in rows[nxt:] for g in r]
    if OV:
        n1, n2 = P.get('k1_split', (1, 1))[:2]
        L += scan(0, rem[:n1], rem[n1:n1 + n2]); rem = rem[n1 + n2:]
        nld = 7 * GPR - len(rem)
        na = P.get('k1_na', 2)
        rem = rem + ANGL[:na]
        lag = P.get('k1_lag', 3)
        nin = P.get('k1_nin', 12)
        L += [f'    v_mov_b32 v{C1}, 0x10000']
        PL = place(0); TA = [A, A + 1, A + 2, A + 3]
        side = []; cj = 0
        for g in rem[:nin]:
            side.append(g); nld += 1
            while cj < 7 and nld >= GPR * (cj + 1) + lag and len(side) > 1: side += conv_row(1, cj, TA, True); cj += 1
        rem = rem[nin:]
        k0 = next((k for k, g in enumerate(side) if any('v_mul_hi' in l for l in g)), len(side))
        L += flat(interleave(PL[:10], side[:k0])) + flat(interleave(PL[10:], side[k0:]))
        L += rb_setup()
        L += bar()
        rb = [readback(j, A + 4 * j) for j in range(13)]
        n4 = P.get('k1_n4', 2)
        L += flat(interleave(rb, rem[:n4]) if rem[:n4] else rb); nld += len(rem[:n4]); rem = rem[n4:]
        L += stamp()
        for g in rem:
            while cj < 7 and nld >= GPR * (cj + 1) + lag: L += conv_row(1, cj); cj += 1
            L += g; nld += 1
        W0 = [store(0, j, A + 4 * j) for j in range(13)]
        w1, w2, w3 = P.get('k1_wsplit', (2, 1, 1))
        W0 = ANGL[na:] + W0
        if AL: assert 7 - na - w1 - w2 - w3 <= 2
        cv = [conv_row(1, j) for j in range(cj, 7)]
        L += flat(interleave(cv, W0[:w1]) if cv else W0[:w1]); W0 = W0[w1:]
    else:
        n1, n2, n3, n4 = P.get('k1_split', (1, 1, 7, 3))
        L += scan(0, rem[:n1], rem[n1:n1 + n2]); rem = rem[n1 + n2:]
        L += flat(interleave(place(0), rem[:n3]) if n3 else place(0)); rem = rem[n3:]
        L += rb_setup()
        L += bar()
        rb = [readback(j, A + 4 * j) for j in range(13)]
        L += [f'    v_mov_b32 v{TMP[0]}, 0', f'    ds_write_b32 v{T4}, v{TMP[0]}']
        L += flat(interleave(rb, rem[:n4]) if n4 and rem[:n4] else rb); rem = rem[n4:]
        L += bar()
        L += flat(rem)
        W0 = [store(0, j, A + 4 * j) for j in range(13)]
        w1, w2, w3 = P.get('k1_wsplit', (2, 1, 1))
        cv = [conv_row(1, j) for j in range(7)]
        L += flat(cv[:7 - w1])
        for z in range(w1): L += cv[7 - w1 + z] + W0[z]
        W0 = W0[w1:]
    L += bar()
    L += scan(1, W0[:w2], W0[w2:w2 + w3]); W0 = W0[w2 + w3:]
    L += flat(interleave(place(1), W0))
    L += rb_setup()
    L += bar()
    dst = [B + 4 * j for j in range(12)] + [A]
    for j in range(13): L += readback(j, dst[j])
    for j in range(13): L += store(1, j, dst[j])
    if prof:
        L += ['    s_waitcnt vmcnt(0)'] + stamp()
        if P.get('hprof') == 9:
            L += ['    s_load_dwordx2 s[4:5], s[0:1], 96', '    s_waitcnt lgkmcnt(0)', '    s_add_u32 s4, s4, 512', '    s_addc_u32 s5, s5, 0', f'    s_cmp_lg_u32 s{S_WAVE}, 0', '    s_cbranch_scc1 .Lk1_end',
                  '    s_mov_b64 exec, 1', '    v_mov_b32 v1, 0', '    s_not_b32 s6, s60', '    v_mov_b32 v2, s6', '    global_atomic_umax v1, v2, s[4:5]']
            for z, i in enumerate((2, 7, 11)):
                L += [f'    v_mov_b32 v2, s{60+2*i}', f'    global_atomic_umax v1, v2, s[4:5] offset:{4+8*z}',
                      f'    s_sub_u32 s6, s{60+2*i}, s60', '    v_mov_b32 v2, s6', f'    global_atomic_add v1, v2, s[4:5] offset:{8+8*z}']
        else: L += prof_dump(pc[0], 40, PROF + WSB, S_WAVE, '.Lk1_pd')
    L += ['.Lk1_end:', '    s_endpgm']
    return process(L)

def prof_dump(n, wsp, off, S_WAVE, lab, base=60):
    L = ['    s_waitcnt lgkmcnt(0)', f'    s_cmp_lg_u32 s{S_WAVE}, 0', f'    s_cbranch_scc1 {lab}']
    L += srd(8, wsp, None, 65536, off)
    L += ['    s_lshl_b32 s12, s2, 7', '    s_mov_b64 exec, 1', '    v_mov_b32 v1, 0']
    for i in range(n):
        L += [f'    v_mov_b32 v2, s{base+2*i}', f'    buffer_store_dword v2, v1, s[8:11], s12 offen offset:{4*i}']
    L += [f'{lab}:']
    return L
```
